```python
import torch

def _softmax(x, axis=-1):
    return torch.softmax(x, dim=axis)
def _gelu(x):
    return torch.nn.functional.gelu(x, approximate="tanh")
def _silu(x):
    return torch.nn.functional.silu(x)
def _sigmoid(x):
    return torch.sigmoid(x)
def _layernorm(x, axis=-1, eps=1e-5):
    m = x.mean(dim=axis, keepdim=True)
    v = x.var(dim=axis, keepdim=True, unbiased=False)
    return (x - m) / torch.sqrt(v + eps)
def _scatter_add(tgt, idx, src, axis=0):
    return tgt.clone().index_add_(axis, idx, src)
def _segment_sum(src, seg, n):
    out = torch.zeros((n,) + src.shape[1:], dtype=src.dtype)
    return out.index_add_(0, seg, src)
def _pad(x, pw):
    flat = tuple(v for pair in reversed(pw) for v in pair)
    return torch.nn.functional.pad(x, flat)

kernel_name = 'parallel_sum__ssm_conv_h3__mixer_channel_mlp__prompt'

def setup_inputs():

    _w = (lambda a: (lambda t: t.to(torch.bfloat16) if t.is_floating_point() else t)(torch.as_tensor(a)))
    def _A_setup():
        B, S, D = 1, 2048, 1024
        ks = 4
        return {
            "q": _w((lambda *s: torch.randn(*s, dtype=torch.bfloat16) * 0.05)(B, S, D)),
            "k": _w((lambda *s: torch.randn(*s, dtype=torch.bfloat16) * 0.2)(B, S, D)),
            "v": _w((lambda *s: torch.randn(*s, dtype=torch.bfloat16) * 0.2)(B, S, D)),
            "shift_k": _w((lambda *s: torch.randn(*s, dtype=torch.bfloat16) * 0.2)(D, ks) * 0.5),
            "ssm_k": _w((lambda *s: torch.randn(*s, dtype=torch.bfloat16) * 0.8)(D, S) * (1.0 / S ** 0.5)),
            "ssm_D": _w((lambda *s: torch.randn(*s, dtype=torch.bfloat16) * 0.2)(D)),
        }
    _A_in = _A_setup()

    def _B_setup():
        B, S, D, F = 1, 2048, 1024, 3584
        return {
            "x": _w((lambda *s: torch.randn(*s, dtype=torch.bfloat16) * 0.05)(B, S, D)),
            "w1": _w((lambda *s: torch.randn(*s, dtype=torch.bfloat16) * 0.8)(D, F) * (D ** -0.5)),
            "b1": _w((lambda *s: torch.randn(*s, dtype=torch.bfloat16) * 0.4)(F)),
            "w2": _w((lambda *s: torch.randn(*s, dtype=torch.bfloat16) * 0.05)(F, D) * (F ** -0.5)),
            "b2": _w((lambda *s: torch.randn(*s, dtype=torch.bfloat16) * 0.05)(D)),
        }
    _B_in = _B_setup()

    return {
        "A_q": _A_in["q"],
        "A_k": _A_in["k"],
        "A_v": _A_in["v"],
        "A_shift_k": _A_in["shift_k"],
        "A_ssm_k": _A_in["ssm_k"],
        "A_ssm_D": _A_in["ssm_D"],
        "B_x": _B_in["x"],
        "B_w1": _B_in["w1"],
        "B_b1": _B_in["b1"],
        "B_w2": _B_in["w2"],
        "B_b2": _B_in["b2"],
    }

def reference(A_q, A_k, A_v, A_shift_k, A_ssm_k, A_ssm_D, B_x, B_w1, B_b1, B_w2, B_b2):
    def _A_ref(q, k, v, shift_k, ssm_k, ssm_D):
        B, S, D = q.shape
        ks = shift_k.shape[-1]
        k_pad = _pad(k, ((0, 0), (ks - 1, 0), (0, 0)))
        k_shift = torch.zeros_like(k)
        for t in range(ks):
            k_shift = k_shift + k_pad[:, t:t + S, :] * shift_k[:, ks - 1 - t][None, None, :]
        kv = k_shift * v
        L = 2 * S
        kv_pad = _pad(kv, ((0, 0), (0, S), (0, 0)))
        kf_pad = _pad(ssm_k, ((0, 0), (0, S)))
        kv_f = (lambda x, axes=(-2,-1): torch.fft.rfft2(x.float(), dim=axes))(kv_pad[:, None, :, :], axes=(1, 2))
        kf_f = (lambda x, axes=(-2,-1): torch.fft.rfft2(x.float(), dim=axes))(kf_pad[:, None, :], axes=(1, 2))
        kf_f = (lambda x, *d: x.permute(*d))(kf_f, 1, 2, 0)
        y_f = kv_f * kf_f[None, :, :, :]
        y = (lambda x, s, axes=(-2,-1): torch.fft.irfft2(x, s=s, dim=axes).to(torch.bfloat16))(y_f, (1, L), axes=(1, 2))[:, 0, :S, :]
        y = y + kv * ssm_D[None, None, :]
        return q * y

    def _B_ref(x, w1, b1, w2, b2):
        y = _layernorm(x, axis=-1)
        h = _gelu(torch.einsum("bsd,df->bsf", y, w1) + b1)
        return torch.einsum("bsf,fd->bsd", h, w2) + b2

    x = A_q
    xn = _layernorm(x, axis=-1)
    return x + _A_ref(xn, A_k, A_v, A_shift_k, A_ssm_k, A_ssm_D) + _B_ref(xn, B_w1, B_b1, B_w2, B_b2)
```

```python
_GL = [0]
class Em:
    def __init__(self):
        self.L = []
    def __call__(self, s):
        for line in s.split('\n'):
            line = line.strip()
            if line: self.L.append(line)
    def label(self, name): self.L.append(name + ':')
    def newlabel(self, p='L'):
        _GL[0] += 1
        return f'{p}_{_GL[0]}'
    def text(self): return '\n'.join(self.L)
    def extend(self, lst):
        for x in lst: self(x)

def vr(b, n=1, k='v'):
    return f'{k}{b}' if n == 1 else f'{k}[{b}:{b+n-1}]'
def ar(b, n=1): return vr(b, n, 'a')
def sr(b, n=1): return vr(b, n, 's')

def interleave(main, fill, start=0, every=1, per=1):
    out = []
    fi = 0
    for i, m in enumerate(main):
        out.append(m)
        if i >= start and (i - start) % every == 0:
            for _ in range(per):
                if fi < len(fill):
                    out.append(fill[fi]); fi += 1
    out.extend(fill[fi:])
    return out

def srd(e, d, base_lo, base_hi, nbytes):
    e(f's_mov_b32 s{d}, s{base_lo}')
    e(f's_and_b32 s{d+1}, s{base_hi}, 0xffff')
    e(f's_mov_b32 s{d+2}, {nbytes}')
    e(f's_mov_b32 s{d+3}, 0x20000')

def kernel(name, body, vgpr, accum, sgpr=102):
    return f'''.globl {name}
.p2align 8
.type {name},@function
{name}:
{body}
s_endpgm
.section .rodata,"a"
.p2align 6
.amdhsa_kernel {name}
  .amdhsa_next_free_vgpr {vgpr}
  .amdhsa_next_free_sgpr {sgpr}
  .amdhsa_accum_offset {accum}
  .amdhsa_group_segment_fixed_size 0
  .amdhsa_kernarg_size 112
  .amdhsa_user_sgpr_count 2
  .amdhsa_user_sgpr_kernarg_segment_ptr 1
  .amdhsa_system_sgpr_workgroup_id_x 1
.end_amdhsa_kernel
.text
'''
HDR = '.amdgcn_target "amdgcn-amd-amdhsa--gfx950"\n.text\n'
```

```python
from asmlib import *
from gen_g1 import WS_H, WS_UR, WS_ZT, WS_ST, WS_CS, WS_FL, WS_TM, UR_PITCH, stamp

CP = 4160
HOFF = 4*CP
CW = HOFF + 512 + 4096

def conv_setup(e, sch, lds_base_s, lane='v1', sc1=''):
    e(f'v_lshlrev_b32 v2, 4, {lane}')
    e('v_mov_b32 v4, 0'); e('v_mov_b32 v5, 0')
    e(f'v_lshlrev_b32 v3, 3, {lane}')
    e(f'v_add_u32 v3, {lds_base_s}, v3')
    e(f'ds_write_b64 v3, v[4:5] offset:{HOFF}')
    e(f'v_lshrrev_b32 v6, 3, {lane}'); e('v_and_b32 v6, 3, v6'); e(f'v_mul_u32_u24 v6, {CP}, v6')
    e(f'v_and_b32 v7, 7, {lane}'); e('v_lshlrev_b32 v7, 3, v7'); e('v_add_u32 v6, v6, v7'); e(f'v_add_u32 v6, {lds_base_s}, v6')
    e('ds_write_b64 v6, v[4:5] offset:4096')
    e(f's_mul_i32 s64, {sch}, {UR_PITCH}'); e(f's_add_u32 s64, s64, {WS_UR}')
    for c in range(4):
        for q4 in range(1):
            e(f's_add_u32 m0, {lds_base_s}, {c*CP}')
            e(f's_add_u32 s65, s64, {2*c}')
            for q in range(4):
                e(f'buffer_load_dwordx4 v2, s[24:27], s65 offen offset:{1024*q}{sc1} lds')
    e(f's_add_u32 m0, {lds_base_s}, {HOFF+512}')
    e(f's_lshl_b32 s65, {sch}, 12')
    for q in range(4):
        e(f'buffer_load_dwordx4 v2, s[60:63], s65 offen offset:{1024*q} lds')

def conv_compute(e, sch, lds_base_s, lane='v1', zsc1=''):
    e(f'v_and_b32 v8, 15, {lane}'); e(f'v_lshrrev_b32 v9, 4, {lane}')
    e('v_sub_u32 v10, 3, v8'); e('v_and_b32 v10, 3, v10'); e(f'v_mul_u32_u24 v10, {CP}, v10')
    e('v_sub_u32 v11, 2047, v8'); e('v_and_b32 v11, 0xfffffffc, v11')
    e('v_lshlrev_b32 v12, 3, v9'); e('v_add_u32 v11, v11, v12')
    e(f'v_subrev_u32 v11, {32*63+16}, v11'); e('v_lshlrev_b32 v11, 1, v11')
    e('v_add_u32 v10, v10, v11'); e(f'v_add_u32 v10, {lds_base_s}, v10')
    e('v_lshlrev_b32 v11, 4, v8'); e('v_lshlrev_b32 v12, 3, v9'); e('v_add_u32 v11, v11, v12')
    e('v_lshlrev_b32 v11, 1, v11'); e(f'v_add_u32 v11, {HOFF+512-480}, v11'); e(f'v_add_u32 v11, {lds_base_s}, v11')
    ACC = 16
    def AF(st, p): return ('a', st*32 + p*4)
    def BF(st, m): return ('a', 64 + m*4) if st == 0 else ('v', 64 + m*4)
    def rg(t, n): return f'{t[0]}[{t[1]}:{t[1]+n-1}]'
    def reads(q):
        st = q & 1
        out = []
        for p in range(8):
            m = p
            j = 8*p + q
            a = AF(st, p); off = 64*(63 - j)
            out.append(f'ds_read_b64 {a[0]}[{a[1]}:{a[1]+1}], v10 offset:{off}')
            out.append(f'ds_read_b64 {a[0]}[{a[1]+2}:{a[1]+3}], v10 offset:{off+8}')
            b = BF(st, m); offb = 512*m + 64*(7 - q)
            out.append(f'ds_read_b128 {rg(b,4)}, v11 offset:{offb}')
        return out
    def mfmas(q):
        st = q & 1
        out = []
        for p in range(8):
            for n in range(p, 8):
                c = '0' if (q == 0 and p == 0) else f'v[{ACC+4*n}:{ACC+4*n+3}]'
                out.append(f'v_mfma_f32_16x16x32_bf16 v[{ACC+4*n}:{ACC+4*n+3}], {rg(AF(st,p),4)}, {rg(BF(st,n-p),4)}, {c}')
        return out
    e.extend(reads(0)); e('s_waitcnt lgkmcnt(0)')
    for q in range(8):
        rd = reads(q+1) if q < 7 else []
        mf = mfmas(q)
        e.extend(interleave(mf, rd))
        e('s_waitcnt lgkmcnt(0)')
    e(f's_lshl_b32 s65, {sch}, 1')
    e('v_mov_b32 v12, s65')
    e('buffer_load_ushort v13, v12, s[68:71], 0 offen')
    e('v_lshlrev_b32 v14, 4, v8'); e('v_lshlrev_b32 v15, 2, v9'); e('v_add_u32 v14, v14, v15')
    e('v_sub_u32 v15, %d, v14' % (2044 - 256*7)); e('v_lshlrev_b32 v15, 1, v15'); e(f'v_add_u32 v15, {lds_base_s}, v15')
    for n in range(8):
        e(f'ds_read_b64 v[{64+2*n}:{65+2*n}], v15 offset:{512*(7-n)}')
    e('s_waitcnt vmcnt(0) lgkmcnt(0)')
    e('v_lshlrev_b32 v13, 16, v13')
    for n in range(8):
        a = ACC + 4*n; k = 64 + 2*n
        e(f'v_lshlrev_b32 v80, 16, v{k}'); e(f'v_and_b32 v81, 0xffff0000, v{k}')
        e(f'v_lshlrev_b32 v82, 16, v{k+1}'); e(f'v_and_b32 v83, 0xffff0000, v{k+1}')
        e(f'v_fmac_f32 v{a+3}, v80, v13'); e(f'v_fmac_f32 v{a+2}, v81, v13')
        e(f'v_fmac_f32 v{a+1}, v82, v13'); e(f'v_fmac_f32 v{a}, v83, v13')
        e(f'v_cvt_pk_bf16_f32 v{96+2*n}, v{a}, v{a+1}'); e(f'v_cvt_pk_bf16_f32 v{97+2*n}, v{a+2}, v{a+3}')
    e('v_and_b32 v84, 1, v9'); e('v_lshlrev_b32 v84, 9, v84')
    e('v_lshrrev_b32 v85, 1, v9'); e('v_lshlrev_b32 v85, 4, v85'); e('v_add_u32 v84, v84, v85')
    e('v_lshlrev_b32 v85, 5, v8'); e('v_add_u32 v84, v84, v85')
    e(f's_lshl_b32 s65, {sch}, 12'); e(f's_add_u32 s65, s65, {WS_ZT}')
    for n in range(0, 8, 2):
        r = 96 + 2*n
        e(f'v_permlane16_swap_b32 v{r}, v{r+2}')
        e(f'v_permlane16_swap_b32 v{r+1}, v{r+3}')
        e('s_nop 1')
        e(f'buffer_store_dwordx4 v[{r}:{r+3}], v84, s[24:27], s65 offen offset:{512*n}{zsc1}')

def gen_conv(name='conv_kernel', stamps=True):
    e = Em()
    e('s_cmp_ge_u32 s2, 256')
    e('s_cbranch_scc1 L_end_%s' % name)
    e('s_load_dwordx2 s[4:5], s[0:1], 32')
    e('s_load_dwordx2 s[6:7], s[0:1], 40')
    e('s_load_dwordx2 s[10:11], s[0:1], 104')
    e('v_lshrrev_b32 v1, 6, v0')
    e('s_nop 1')
    e('v_readfirstlane_b32 s34, v1')
    e('v_and_b32 v1, 63, v0')
    e('s_waitcnt lgkmcnt(0)')
    srd(e, 24, 10, 11, 0x10000000)
    srd(e, 60, 4, 5, 1024*2048*2)
    srd(e, 68, 6, 7, 1024*2)
    e('s_lshl_b32 s94, s2, 3'); e('s_add_u32 s94, s94, s34'); e('s_lshl_b32 s94, s94, 7'); e(f's_add_u32 s94, s94, {WS_TM}')
    if stamps: stamp(e, 8)
    e('s_lshl_b32 s72, s2, 2'); e('s_add_u32 s72, s72, s34')
    e(f's_mul_i32 s73, s34, {CW}')
    conv_setup(e, 's72', 's73')
    e('s_waitcnt vmcnt(0) lgkmcnt(0)')
    if stamps: stamp(e, 9)
    conv_compute(e, 's72', 's73')
    e('s_waitcnt vmcnt(0)')
    if stamps: stamp(e, 10)
    e.label('L_end_%s' % name)
    return kernel(name, e.text(), 256, 160)
```

```python
from asmlib import *

WS_H   = 0x0000000
WS_UR  = 0x1000000
WS_ZT  = 0x1500000
WS_ST  = 0x1A00000
WS_CS  = 0x1A10000
WS_FL  = 0x1A40000
WS_TM  = 0x1B00000
UR_PITCH = 4224

import struct, math
def f2u(x): return struct.unpack('<I', struct.pack('<f', x))[0]
C0 = -2.0 * math.sqrt(2.0 / math.pi) * math.log2(math.e)
C1 = C0 * 0.044715

def stamp(e, slot, swave='s34', tmp_v=('v150','v151'), srd_ws='s[24:27]'):
    e(f's_memtime s[90:91]')
    e(f's_memrealtime s[92:93]')
    e('s_waitcnt lgkmcnt(0)')
    e(f'v_mov_b32 {tmp_v[0]}, s90')
    e(f'v_mov_b32 {tmp_v[1]}, s92')
    a, b = int(tmp_v[0][1:]), int(tmp_v[1][1:])
    assert b == a + 1
    e(f'v_mov_b32 v{a+2}, s94')
    e(f'buffer_store_dwordx2 v[{a}:{b}], v{a+2}, {srd_ws}, 0 offen offset:{slot*8}')

def gen_g1(mode='spec', name='g1_kernel', do_mfma=True, do_dma=True, do_epi=True, stamps=True, prio=False):
    e = Em()
    spec = (mode == 'spec')
    WB = 0; XB = 86016; CSB = 151552
    e('s_cmp_ge_u32 s2, 256')
    e('s_cbranch_scc1 L_end_%s' % name)
    e('s_load_dwordx2 s[4:5], s[0:1], 0')
    e('s_load_dwordx2 s[6:7], s[0:1], 56')
    e('s_load_dwordx2 s[8:9], s[0:1], 64')
    e('s_load_dwordx2 s[10:11], s[0:1], 104')
    e('v_lshrrev_b32 v1, 6, v0')
    e('s_nop 1')
    e('v_readfirstlane_b32 s34, v1')
    e('v_and_b32 v1, 63, v0')
    e('s_and_b32 s35, s2, 7')
    e('s_lshr_b32 s36, s2, 3')
    e('s_and_b32 s32, s35, 1'); e('s_lshl_b32 s32, s32, 3'); e('s_and_b32 s37, s36, 7'); e('s_add_u32 s32, s32, s37')
    e('s_lshr_b32 s33, s35, 1'); e('s_lshl_b32 s33, s33, 2'); e('s_lshr_b32 s37, s36, 3'); e('s_add_u32 s33, s33, s37')
    e('s_waitcnt lgkmcnt(0)')
    srd(e, 16, 4, 5, 2048*1024*2)
    srd(e, 20, 6, 7, 1024*3584*2)
    srd(e, 24, 10, 11, 0x10000000)
    srd(e, 28, 8, 9, 3584*2)
    e('s_lshl_b32 s94, s2, 3'); e('s_add_u32 s94, s94, s34'); e('s_lshl_b32 s94, s94, 7'); e(f's_add_u32 s94, s94, {WS_TM}')
    if stamps: stamp(e, 0)
    if spec:
        e('s_sub_u32 s38, s34, 4')
    else:
        e('s_mov_b32 s38, s34')
    def loader_setup():
        b = LB
        e(f'v_lshrrev_b32 v{b+11}, 3, v1')
        e(f'v_and_b32 v{b+12}, 7, v1')
        e(f'v_xor_b32 v{b+12}, v{b+12}, v{b+11}')
        e(f'v_lshlrev_b32 v{b+12}, 4, v{b+12}')
        e(f's_lshl_b32 s39, s38, 5')
        e(f'v_add_u32 v{b+11}, s39, v{b+11}')
        e(f'v_lshlrev_b32 v{b+11}, 11, v{b+11}')
        e(f'v_add_u32 v{b}, v{b+11}, v{b+12}')
        for q in range(1, 4):
            e(f'v_add_u32 v{b+q}, {q*(16384-1024)}, v{b}')
        for q in range(7):
            e(f'v_add_u32 v{b+11}, {64*q}, v1')
            e(f'v_mul_u32_u24 v{b+12}, 2341, v{b+11}')
            e(f'v_lshrrev_b32 v{b+12}, 16, v{b+12}')
            e(f'v_mul_u32_u24 v{b+13}, 28, v{b+12}')
            e(f'v_sub_u32 v{b+11}, v{b+11}, v{b+13}')
            e(f'v_lshrrev_b32 v{b+13}, 3, v{b+12}')
            e(f'v_lshlrev_b32 v{b+13}, 1, v{b+13}')
            e(f'v_xor_b32 v{b+11}, v{b+11}, v{b+13}')
            e(f'v_lshlrev_b32 v{b+11}, 4, v{b+11}')
            e(f'v_mul_u32_u24 v{b+12}, 7168, v{b+12}')
            e(f'v_add_u32 v{b+11}, v{b+11}, v{b+12}')
            imm = 1024 * (q % 4)
            e(f'v_subrev_u32 v{b+4+q}, {imm}, v{b+11}')
        e('s_lshl_b32 s40, s32, 18')
        e('s_lshl_b32 s41, s38, 12'); e(f's_add_u32 s41, s41, {XB}')
        e('s_lshr_b32 s42, s38, 1')
        e('s_and_b32 s43, s38, 1')
        e('s_mul_i32 s44, s33, 448')
        e('s_mul_i32 s45, s43, %d' % (16*7168)); e('s_add_u32 s44, s44, s45')
        e('s_mul_i32 s45, s42, %d' % (32*7168)); e('s_sub_u32 s44, s44, s45')
        e('s_mul_i32 s45, s42, %d' % (5*14336))
        e('s_mul_i32 s46, s43, 7168'); e('s_add_u32 s45, s45, s46'); e(f's_add_u32 s45, s45, {WB}')
    def dma_x(stage):
        b = LB
        out = [f's_add_u32 m0, s41, {(stage % 4)*16384}', f's_add_u32 s47, s40, {stage*128}']
        for q in range(4):
            out.append(f'buffer_load_dwordx4 v{b+q}, s[16:19], s47 offen offset:{1024*q} lds')
        return out
    def dma_w():
        b = LB
        out = ['s_mov_b32 m0, s45', 's_nop 0']
        for q in range(4):
            out.append(f'buffer_load_dwordx4 v{b+4+q}, s[20:23], s44 offen offset:{1024*q} lds')
        out += ['s_add_u32 m0, s45, 4096', 's_nop 0']
        for q in range(4, 7):
            out.append(f'buffer_load_dwordx4 v{b+4+q}, s[20:23], s44 offen offset:{1024*(q-4)} lds')
        return out
    def adv_w():
        return [f's_add_u32 s44, s44, {64*7168}', 's_add_u32 s45, s45, 28672',
                f's_cmp_ge_u32 s45, {WB+86016}', f's_cselect_b32 s46, 86016, 0', 's_sub_u32 s45, s45, s46']
    nodma = lambda l: l if do_dma else [x for x in l if not x.startswith('buffer_load')]

    ACC = 16
    def acc(fb, sb): return ACC + (fb*4 + sb)*4
    def XF(st, sb): return st*16 + sb*4
    def WF(st, fb): return 32 + st*28 + fb*4
    def reads(t):
        st = t & 1; stage = t >> 1; ks = t & 1
        xs = stage % 4; wsl = t % 6
        out = []
        xr = [f'ds_read_b128 a[{XF(st,sb)}:{XF(st,sb)+3}], v{2+ks} offset:{xs*16384+sb*2048}' for sb in range(4)]
        wr = []
        for fb in range(7):
            for h in range(2):
                base = 4 + (fb & 1) + 2*(wsl >= 3)
                wr.append(f'ds_read_b64_tr_b16 a[{WF(st,fb)+2*h}:{WF(st,fb)+2*h+1}], v{base} offset:{(wsl%3)*14336+32*fb+1792*h}')
        return wr[:2] + xr + wr[2:]
    def mfmas(t):
        st = t & 1
        out = []
        for fb in range(7):
            for sb in range(4):
                c = '0' if t == 0 else f'v[{acc(fb,sb)}:{acc(fb,sb)+3}]'
                out.append(f'v_mfma_f32_16x16x32_bf16 v[{acc(fb,sb)}:{acc(fb,sb)+3}], a[{WF(st,fb)}:{WF(st,fb)+3}], a[{XF(st,sb)}:{XF(st,sb)+3}], {c}')
        return out if do_mfma else ['s_nop 0'] * 2
    def consumer_setup():
        e('s_and_b32 s48, s34, 1'); e('s_lshr_b32 s49, s34, 1'); e('s_and_b32 s49, s49, 1')
        e('v_and_b32 v8, 15, v1')
        e('v_lshrrev_b32 v9, 4, v1')
        e('s_lshl_b32 s50, s48, 6')
        e('v_add_u32 v10, s50, v8')
        e('v_lshlrev_b32 v10, 7, v10')
        e('v_and_b32 v11, 7, v8')
        e('v_xor_b32 v12, v9, v11')
        e('v_lshlrev_b32 v12, 4, v12')
        e('v_add_u32 v2, v10, v12'); e(f'v_add_u32 v2, {XB}, v2')
        e('v_xor_b32 v3, 64, v2')
        e('v_lshrrev_b32 v10, 2, v8')
        e('v_lshlrev_b32 v11, 3, v9')
        e('v_add_u32 v10, v10, v11')
        e('v_mul_u32_u24 v10, 448, v10')
        e('v_and_b32 v11, 3, v8'); e('v_lshlrev_b32 v11, 3, v11')
        e('v_add_u32 v10, v10, v11')
        e('s_mul_i32 s50, s49, 224'); e(f's_add_u32 s50, s50, {WB}')
        e('v_add_u32 v10, s50, v10')
        e('v_and_b32 v11, 1, v9'); e('v_lshlrev_b32 v11, 5, v11')
        e('v_add_u32 v12, v10, v11')
        e('v_sub_u32 v13, v10, v11')
        e('s_cmp_eq_u32 s49, 0'); e('s_cselect_b64 vcc, -1, 0')
        e('v_cndmask_b32 v4, v13, v12, vcc')
        e('v_cndmask_b32 v5, v12, v13, vcc')
        e(f'v_add_u32 v6, {3*14336}, v4'); e(f'v_add_u32 v7, {3*14336}, v5')

    def epilogue():
        e('v_and_b32 v128, 15, v1')
        e('s_lshl_b32 s50, s32, 7'); e('s_lshl_b32 s51, s48, 6'); e('s_add_u32 s50, s50, s51')
        e('v_add_u32 v128, s50, v128'); e('v_lshlrev_b32 v128, 4, v128'); e(f'v_add_u32 v128, {WS_ST+8}, v128')
        for sb in range(4):
            e(f'buffer_load_dwordx2 v[{8+2*sb}:{9+2*sb}], v128, s[24:27], 0 offen offset:{sb*256}')
        e('v_lshrrev_b32 v129, 4, v1'); e('v_lshlrev_b32 v129, 4, v129')
        e('s_mul_i32 s50, s49, 448'); e(f's_add_u32 s50, s50, {CSB}')
        e('v_add_u32 v129, s50, v129')
        e('s_lshl_b32 s50, s32, 3'); e('s_lshl_b32 s51, s48, 2'); e('s_add_u32 s50, s50, s51')
        e('s_mul_i32 s50, s50, %d' % (112*1024))
        e('s_mul_i32 s51, s33, %d' % (7*1024)); e('s_add_u32 s50, s50, s51')
        e(f's_add_u32 s50, s50, {WS_H}')
        e('v_lshlrev_b32 v130, 4, v1')
        e('s_mov_b32 s52, 0x%x' % f2u(C1)); e('v_mov_b32 v131, 0x%x' % f2u(C0))
        e('s_waitcnt vmcnt(0)')
        T = 144
        def gelu_block(fb, sb, outreg):
            a = acc(fb, sb); R = 8 + 2*sb; Rm = R + 1
            rr = range(4)
            o = []
            for r in rr: o.append(f'v_fma_f32 v{T+r}, -v{Rm}, v{132+r}, v{136+r}')
            for r in rr: o.append(f'v_fma_f32 v{a+r}, v{R}, v{a+r}, v{T+r}')
            for r in rr: o.append(f'v_mul_f32 v{T+r}, v{a+r}, v{a+r}')
            for r in rr: o.append(f'v_fma_f32 v{T+r}, v{T+r}, s52, v131')
            for r in rr: o.append(f'v_mul_f32 v{T+r}, v{T+r}, v{a+r}')
            for r in rr: o.append(f'v_exp_f32 v{T+r}, v{T+r}')
            for r in rr: o.append(f'v_add_f32 v{T+r}, 1.0, v{T+r}')
            for r in rr: o.append(f'v_rcp_f32 v{T+r}, v{T+r}')
            for r in rr: o.append(f'v_mul_f32 v{a+r}, v{a+r}, v{T+r}')
            o.append(f'v_cvt_pk_bf16_f32 v{outreg}, v{a}, v{a+1}')
            o.append(f'v_cvt_pk_bf16_f32 v{outreg+1}, v{a+2}, v{a+3}')
            return o
        lab1 = e.newlabel('L_wn1'); labj = e.newlabel('L_wnj')
        e('s_cmp_eq_u32 s49, 1'); e(f's_cbranch_scc1 {lab1}')
        for wn in range(2):
            if wn == 1: e.label(lab1)
            for fb in range(7):
                lb = 7*wn + fb
                pair = lb >> 1; half = lb & 1
                e(f'ds_read_b128 v[132:135], v129 offset:{fb*64}')
                e(f'ds_read_b128 v[136:139], v129 offset:{fb*64+896}')
                e('s_waitcnt lgkmcnt(0)')
                for sb in range(4):
                    single = (lb == 6 or lb == 7)
                    if single:
                        o = 152 + (sb & 1)*4
                        e.extend(gelu_block(fb, sb, o))
                        e(f's_add_u32 s53, s50, {sb*112*1024 + pair*1024}')
                        e(f'buffer_store_dwordx2 v[{o}:{o+1}], v130, s[24:27], s53 offen offset:{8*half}')
                    elif half == 0:
                        a = acc(fb, sb)
                        e.extend(gelu_block(fb, sb, a))
                    else:
                        a0 = acc(fb-1, sb)
                        e.extend(gelu_block(fb, sb, a0+2))
                        e(f's_add_u32 s53, s50, {sb*112*1024 + pair*1024}')
                        e(f'buffer_store_dwordx4 v[{a0}:{a0+3}], v130, s[24:27], s53 offen')
            if wn == 0: e(f's_branch {labj}')
        e.label(labj)

    LB = 100 if spec else 200
    if spec:
        labL = 'L_loader_%s' % name
        e('s_cmp_ge_u32 s34, 4'); e(f's_cbranch_scc1 {labL}')
        if prio: e('s_setprio 1')
        consumer_setup()
        e('s_barrier')
        e.extend(reads(0)); e('s_waitcnt lgkmcnt(0)')
        if stamps: stamp(e, 1)
        for i in range(16):
            e('s_barrier')
            for t in (2*i, 2*i+1):
                rd = reads(t+1) if t+1 < 32 else []
                e.extend(interleave(mfmas(t), rd))
                e('s_waitcnt lgkmcnt(0)')
        e('s_barrier')
        if stamps: stamp(e, 2)
        if do_epi: epilogue()
        e('s_waitcnt vmcnt(0)')
        if stamps: stamp(e, 3)
        e('s_branch L_end_%s' % name)
        e.label(labL)
        loader_setup()
        labskip = e.newlabel('L_skip')
        e.extend(nodma(dma_x(0)))
        e('s_cmp_eq_u32 s42, 1'); e(f's_cbranch_scc1 {labskip}')
        e.extend(nodma(dma_w())); e.label(labskip); e.extend(adv_w())
        e.extend(nodma(dma_x(1))); e.extend(nodma(dma_w())); e.extend(adv_w())
        e.extend(nodma(dma_x(2))); e.extend(nodma(dma_w())); e.extend(adv_w())
        e('s_waitcnt vmcnt(11)')
        e('s_barrier')
        e('s_barrier')
        for i in range(16):
            if i <= 12:
                e.extend(nodma(dma_x(i+3))); e.extend(nodma(dma_w())); e.extend(adv_w())
                e('s_waitcnt vmcnt(11)')
            elif i == 13:
                lab = e.newlabel('L_skip')
                e('s_cmp_eq_u32 s42, 0'); e(f's_cbranch_scc1 {lab}')
                e.extend(nodma(dma_w())); e('s_waitcnt vmcnt(7)');
                lab2 = e.newlabel('L_j'); e(f's_branch {lab2}')
                e.label(lab); e('s_waitcnt vmcnt(0)'); e.label(lab2)
            elif i == 14:
                e('s_waitcnt vmcnt(0)')
                e('s_lshl_b32 s50, s38, 6'); e('v_add_u32 v20, s50, v1')
                e('s_mul_i32 s51, s33, 224'); e('v_add_u32 v21, s51, v20')
                e('v_lshlrev_b32 v22, 2, v21'); e(f'v_add_u32 v22, {WS_CS}, v22')
                for p in range(8):
                    e(f's_mov_b32 s53, {p*3584*4}')
                    e(f'buffer_load_dword v{24+p}, v22, s[24:27], s53 offen')
                e('v_lshlrev_b32 v23, 1, v21')
                e('buffer_load_ushort v32, v23, s[28:31], 0 offen')
            elif i == 15:
                e('s_waitcnt vmcnt(0)')
                for p in range(1, 8): e(f'v_add_f32 v24, v24, v{24+p}')
                e('v_lshlrev_b32 v32, 16, v32')
                e('v_lshlrev_b32 v20, 2, v20'); e(f'v_add_u32 v20, {CSB}, v20')
                e('v_cmp_gt_u32 vcc, 0x%x, v20' % (CSB + 896))
                e('s_and_saveexec_b64 s[54:55], vcc')
                lab = e.newlabel('L_x'); e(f's_cbranch_execz {lab}')
                e('ds_write_b32 v20, v24'); e('ds_write_b32 v20, v32 offset:896')
                e.label(lab); e('s_mov_b64 exec, s[54:55]')
                e('s_waitcnt lgkmcnt(0)')
            e('s_barrier')
        if stamps: stamp(e, 2)
    else:
        raise NotImplementedError
    e.label('L_end_%s' % name)
    return kernel(name, e.text(), 256, 160)

if __name__ == '__main__':
    t = gen_g1()
    print(len(t.split('\n')))
```

```python
from asmlib import *
from gen_g1 import WS_H, WS_UR, WS_ZT, WS_ST, WS_CS, WS_FL, WS_TM, stamp

def gen_g2(name='g2_kernel', do_mfma=True, do_dma=True, do_epi=True, stamps=True, NS=6, sc1='', wrap=0, only=None, xmap=0, noread=False):
    e = Em()
    SLOT = 24576; NST = 56
    NL = {None: 6, 'h': 4, 'w': 2}[only]
    e('s_cmp_ge_u32 s2, 256')
    e('s_cbranch_scc1 L_end_%s' % name)
    e('s_load_dwordx2 s[4:5], s[0:1], 0')
    e('s_load_dwordx2 s[6:7], s[0:1], 72')
    e('s_load_dwordx2 s[8:9], s[0:1], 80')
    e('s_load_dwordx2 s[10:11], s[0:1], 104')
    e('s_load_dwordx2 s[12:13], s[0:1], 88')
    e('v_lshrrev_b32 v1, 6, v0')
    e('s_nop 1')
    e('v_readfirstlane_b32 s34, v1')
    e('v_and_b32 v1, 63, v0')
    e('s_and_b32 s35, s2, 7'); e('s_lshr_b32 s36, s2, 3')
    if xmap == 0:
        e('s_and_b32 s32, s35, 3'); e('s_lshl_b32 s32, s32, 2'); e('s_and_b32 s37, s36, 3'); e('s_add_u32 s32, s32, s37')
        e('s_lshr_b32 s33, s35, 2'); e('s_lshl_b32 s33, s33, 3'); e('s_lshr_b32 s37, s36, 2'); e('s_add_u32 s33, s33, s37')
    elif xmap == 1:
        e('s_lshl_b32 s32, s35, 1'); e('s_and_b32 s37, s36, 1'); e('s_add_u32 s32, s32, s37')
        e('s_lshr_b32 s33, s36, 1')
    elif xmap == 2:
        e('s_and_b32 s32, s35, 1'); e('s_lshl_b32 s32, s32, 3'); e('s_and_b32 s37, s36, 7'); e('s_add_u32 s32, s32, s37')
        e('s_lshr_b32 s33, s35, 1'); e('s_lshl_b32 s33, s33, 2'); e('s_lshr_b32 s37, s36, 3'); e('s_add_u32 s33, s33, s37')
    elif xmap == 3:
        e('s_and_b32 s32, s2, 15'); e('s_lshr_b32 s33, s2, 4')
    e('s_waitcnt lgkmcnt(0)')
    srd(e, 16, 4, 5, 2048*1024*2)
    srd(e, 20, 6, 7, 3584*1024*2)
    srd(e, 24, 10, 11, 0x10000000)
    srd(e, 28, 8, 9, 1024*2)
    srd(e, 56, 12, 13, 2048*1024*2)
    e('s_lshl_b32 s94, s2, 3'); e('s_add_u32 s94, s94, s34'); e('s_lshl_b32 s94, s94, 7'); e(f's_add_u32 s94, s94, {WS_TM}')
    if stamps: stamp(e, 4)
    labL = 'L_loader_%s' % name
    e('s_cmp_ge_u32 s34, 4'); e(f's_cbranch_scc1 {labL}')
    ACC = 16
    def acc(db, sb): return ACC + (db*4 + sb)*4
    def HF(st, kk, sb): return st*48 + kk*24 + sb*4
    def WF(st, kk, db): return st*48 + kk*24 + 16 + db*4
    e('s_and_b32 s48, s34, 1'); e('s_lshr_b32 s49, s34, 1')
    e('v_and_b32 v8, 15, v1'); e('v_lshrrev_b32 v9, 4, v1')
    e('s_lshl_b32 s50, s48, 13'); e('v_lshlrev_b32 v2, 4, v1'); e('v_add_u32 v2, s50, v2')
    e('v_lshrrev_b32 v10, 2, v8')
    e('v_lshlrev_b32 v11, 2, v9'); e('v_add_u32 v10, v10, v11')
    e('v_lshrrev_b32 v11, 1, v10'); e('v_and_b32 v11, 3, v11')
    e('v_lshlrev_b32 v10, 7, v10')
    e('v_and_b32 v12, 3, v8'); e('v_lshlrev_b32 v12, 3, v12'); e('v_add_u32 v10, v10, v12')
    e('v_add_u32 v10, 16384, v10')
    e('s_lshl_b32 s50, s49, 1')
    for db in range(2):
        e(f's_add_u32 s51, s50, {db}')
        e('v_xor_b32 v12, s51, v11'); e('v_lshlrev_b32 v12, 5, v12')
        e(f'v_add_u32 v{3+db}, v10, v12')
    for hb in range(1, (NS+1)//2):
        e(f'v_add_u32 v{128+hb*3}, {hb*2*SLOT}, v2')
        e(f'v_add_u32 v{129+hb*3}, {hb*2*SLOT}, v3')
        e(f'v_add_u32 v{130+hb*3}, {hb*2*SLOT}, v4')
    e('v_mov_b32 v128, v2'); e('v_mov_b32 v129, v3'); e('v_mov_b32 v130, v4')
    def reads(i):
        st = i & 1; sl = i % NS; hb = sl // 2; off = (sl % 2)*SLOT
        out = []
        for kk in range(2):
            for db in range(2):
                for h in range(2):
                    out.append(f'ds_read_b64_tr_b16 a[{WF(st,kk,db)+2*h}:{WF(st,kk,db)+2*h+1}], v{129+hb*3+db} offset:{off+kk*4096+h*2048}')
            for sb in range(4):
                out.append(f'ds_read_b128 a[{HF(st,kk,sb)}:{HF(st,kk,sb)+3}], v{128+hb*3} offset:{off+sb*2048+kk*1024}')
        return out if not noread else []
    def mfmas(i):
        st = i & 1
        out = []
        for kk in range(2):
            for db in range(2):
                for sb in range(4):
                    c = '0' if (i == 0 and kk == 0) else f'v[{acc(db,sb)}:{acc(db,sb)+3}]'
                    out.append(f'v_mfma_f32_16x16x32_bf16 v[{acc(db,sb)}:{acc(db,sb)+3}], a[{WF(st,kk,db)}:{WF(st,kk,db)+3}], a[{HF(st,kk,sb)}:{HF(st,kk,sb)+3}], {c}')
        return out if do_mfma else ['s_nop 0']*2
    e('s_barrier')
    e.extend(reads(0)); e('s_waitcnt lgkmcnt(0)')
    if stamps: stamp(e, 5)
    for i in range(NST):
        e('s_barrier')
        rd = reads(i+1) if i+1 < NST else []
        e.extend(interleave(mfmas(i), rd))
        e('s_waitcnt lgkmcnt(0)')
    e('s_barrier')
    if stamps: stamp(e, 6)
    XT = 2*SLOT; ZT = 3*SLOT
    if do_epi:
        e('s_lshl_b32 s50, s32, 7'); e('s_lshl_b32 s51, s48, 6'); e('s_add_u32 s50, s50, s51')
        e('v_add_u32 v64, s50, v8'); e('v_lshlrev_b32 v64, 4, v64'); e(f'v_add_u32 v64, {WS_ST}, v64')
        for sb in range(4):
            e(f'buffer_load_dwordx2 v[{48+2*sb}:{49+2*sb}], v64, s[24:27], 0 offen offset:{sb*256}{sc1}')
        e('s_lshl_b32 s50, s33, 6'); e('s_lshl_b32 s51, s49, 5'); e('s_add_u32 s50, s50, s51')
        e('v_lshlrev_b32 v65, 2, v9'); e('v_add_u32 v65, s50, v65'); e('v_lshlrev_b32 v65, 1, v65')
        for db in range(2):
            e(f'buffer_load_dwordx2 v[{56+2*db}:{57+2*db}], v65, s[28:31], 0 offen offset:{db*32}')
        e('s_lshl_b32 s50, s48, 13')
        e('v_lshlrev_b32 v66, 7, v8'); e('v_add_u32 v66, s50, v66')
        e('v_and_b32 v67, 1, v9'); e('v_lshlrev_b32 v67, 3, v67'); e('v_add_u32 v66, v66, v67')
        e('v_lshrrev_b32 v67, 1, v9'); e('v_and_b32 v68, 7, v8')
        e('s_lshl_b32 s50, s49, 2')
        for db in range(2):
            e(f's_add_u32 s51, s50, {2*db}')
            e('v_add_u32 v69, s51, v67'); e('v_xor_b32 v69, v69, v68'); e('v_lshlrev_b32 v69, 4, v69')
            e(f'v_add_u32 v{70+db}, v66, v69')
            if XT: e(f'v_add_u32 v{70+db}, {XT}, v{70+db}')
        e('v_lshrrev_b32 v66, 2, v8'); e('v_lshlrev_b32 v67, 2, v9'); e('v_add_u32 v66, v66, v67')
        e('v_and_b32 v67, 7, v66')
        e('s_lshl_b32 s50, s49, 5'); e('v_add_u32 v66, s50, v66'); e('v_lshlrev_b32 v66, 8, v66')
        e('v_and_b32 v68, 3, v8'); e('v_lshlrev_b32 v68, 3, v68'); e('v_add_u32 v66, v66, v68')
        e(f'v_add_u32 v66, {ZT}, v66')
        e('s_lshl_b32 s50, s48, 2')
        for sb in range(4):
            e(f's_add_u32 s51, s50, {sb}')
            e('v_xor_b32 v69, s51, v67'); e('v_lshlrev_b32 v69, 5, v69')
            e(f'v_add_u32 v{72+sb}, v66, v69')
        e('s_waitcnt vmcnt(0)')
        for db in range(2):
            e(f'v_lshlrev_b32 v60, 16, v{56+2*db}'); e(f'v_and_b32 v61, 0xffff0000, v{56+2*db}')
            e(f'v_lshlrev_b32 v62, 16, v{57+2*db}'); e(f'v_and_b32 v63, 0xffff0000, v{57+2*db}')
            for sb in range(4):
                a = acc(db, sb)
                e(f'ds_read_b64 v[76:77], v{70+db} offset:{sb*2048}')
                e(f'ds_read_b64_tr_b16 v[78:79], v{72+sb} offset:{db*4096}')
                e('s_waitcnt lgkmcnt(0)')
                e('v_lshlrev_b32 v80, 16, v76'); e('v_and_b32 v81, 0xffff0000, v76')
                e('v_lshlrev_b32 v82, 16, v77'); e('v_and_b32 v83, 0xffff0000, v77')
                e('v_lshlrev_b32 v84, 16, v78'); e('v_and_b32 v85, 0xffff0000, v78')
                e('v_lshlrev_b32 v86, 16, v79'); e('v_and_b32 v87, 0xffff0000, v79')
                m_, r1 = 48+2*sb, 49+2*sb
                for r in range(4): e(f'v_add_f32 v{a+r}, v{a+r}, v{60+r}')
                for r in range(4): e(f'v_add_f32 v{a+r}, v{a+r}, v{80+r}')
                for r in range(4): e(f'v_sub_f32 v{80+r}, v{80+r}, v{m_}')
                for r in range(4): e(f'v_mul_f32 v{80+r}, v{80+r}, v{r1}')
                for r in range(4): e(f'v_fmac_f32 v{a+r}, v{80+r}, v{84+r}')
                e(f'v_cvt_pk_bf16_f32 v76, v{a}, v{a+1}'); e(f'v_cvt_pk_bf16_f32 v77, v{a+2}, v{a+3}')
                e(f'ds_write_b64 v{70+db}, v[76:77] offset:{sb*2048}')
        e('s_waitcnt lgkmcnt(0)')
    e('s_barrier')
    if do_epi:
        e('v_lshrrev_b32 v8, 3, v1'); e('v_and_b32 v9, 7, v1')
        e('s_lshl_b32 s50, s34, 5'); e('v_add_u32 v10, s50, v8')
        e('v_lshlrev_b32 v11, 7, v10'); e('v_xor_b32 v12, v9, v8'); e('v_lshlrev_b32 v12, 4, v12'); e('v_add_u32 v11, v11, v12')
        if XT: e(f'v_add_u32 v11, {XT}, v11')
        e('s_lshl_b32 s50, s32, 7'); e('v_add_u32 v10, s50, v10'); e('v_lshlrev_b32 v10, 11, v10')
        e('v_lshlrev_b32 v9, 4, v9'); e('v_add_u32 v10, v10, v9')
        e('s_lshl_b32 s50, s33, 7')
        for q in range(4):
            e(f'ds_read_b128 v[{16+4*q}:{19+4*q}], v11 offset:{q*1024}')
        for q in range(4):
            e(f's_waitcnt lgkmcnt({3-q})')
            e(f's_add_u32 s51, s50, {q*8*2048}')
            e(f'buffer_store_dwordx4 v[{16+4*q}:{19+4*q}], v10, s[56:59], s51 offen')
    e('s_waitcnt vmcnt(0)')
    if stamps: stamp(e, 7)
    e('s_branch L_end_%s' % name)
    e.label(labL)
    e('s_sub_u32 s38, s34, 4')
    e('v_lshlrev_b32 v2, 4, v1'); e(f'v_add_u32 v3, {112*1024-2048}, v2')
    e('s_lshl_b32 s40, s32, 3'); e('s_lshl_b32 s41, s38, 1'); e('s_add_u32 s40, s40, s41'); e('s_mul_i32 s40, s40, %d' % (112*1024))
    e(f's_add_u32 s40, s40, {WS_H}')
    e('s_lshl_b32 s41, s38, 12')
    e('v_lshrrev_b32 v6, 3, v1'); e('v_and_b32 v7, 7, v1')
    e('v_lshrrev_b32 v8, 1, v7'); e('v_lshrrev_b32 v9, 1, v6'); e('v_xor_b32 v8, v8, v9'); e('v_lshlrev_b32 v8, 1, v8')
    e('v_and_b32 v9, 1, v7'); e('v_or_b32 v8, v8, v9'); e('v_lshlrev_b32 v8, 4, v8')
    e('v_lshlrev_b32 v6, 11, v6'); e('v_add_u32 v4, v6, v8'); e(f'v_add_u32 v5, {8*2048-1024}, v4')
    e('s_lshl_b32 s42, s38, 15'); e('s_lshl_b32 s44, s33, 7'); e('s_add_u32 s42, s42, s44')
    e('s_lshl_b32 s43, s38, 11'); e('s_add_u32 s43, s43, 16384')
    def dma(i):
        sl = (i % NS)*SLOT
        ig = i % wrap if wrap else i
        out = [f's_add_u32 m0, s43, {sl}', f's_add_u32 s47, s42, {ig*64*2048}']
        if only != 'h':
            for q in range(2): out.append(f'buffer_load_dwordx4 v{4+q}, s[20:23], s47 offen offset:{1024*q} lds')
        out += [f's_add_u32 m0, s41, {sl}', f's_add_u32 s47, s40, {ig*2048}']
        if only != 'w':
            for q in range(4): out.append(f'buffer_load_dwordx4 v{2+(q>>1)}, s[24:27], s47 offen offset:{1024*q}{sc1} lds')
        return out if do_dma else [x for x in out if not x.startswith('buffer')]
    for i in range(NS): e.extend(dma(i))
    e(f's_waitcnt vmcnt({NL*(NS-1)})')
    e('s_barrier')
    e(f's_waitcnt vmcnt({NL*(NS-2)})')
    e('s_barrier')
    def epi_loads():
        o = []
        o += ['v_lshrrev_b32 v10, 3, v1', 'v_and_b32 v11, 7, v1', 'v_xor_b32 v11, v11, v10', 'v_lshlrev_b32 v11, 4, v11',
              's_lshl_b32 s50, s38, 5', 'v_add_u32 v10, s50, v10', 'v_lshlrev_b32 v10, 11, v10', 'v_add_u32 v12, v10, v11',
              's_lshl_b32 s50, s32, 18', 's_lshl_b32 s51, s33, 7', 's_add_u32 s50, s50, s51',
              's_lshl_b32 s51, s38, 12', f's_add_u32 m0, s51, {2*SLOT}']
        for q in range(4):
            o += [f'v_add_u32 v13, {q*(16384-1024)}, v12', f'buffer_load_dwordx4 v13, s[16:19], s50 offen offset:{1024*q} lds']
        o += ['v_lshrrev_b32 v10, 4, v1', 'v_and_b32 v11, 15, v1', 'v_lshrrev_b32 v14, 1, v11', 'v_and_b32 v11, 1, v11']
        o += ['s_lshl_b32 s50, s33, 6', 's_lshl_b32 s51, s38, 4', 's_add_u32 s50, s50, s51', 's_lshl_b32 s50, s50, 12',
              's_lshl_b32 s51, s32, 8', 's_add_u32 s50, s50, s51', f's_add_u32 s50, s50, {WS_ZT}',
              's_lshl_b32 s51, s38, 12', f's_add_u32 m0, s51, {3*SLOT}']
        for q in range(4):
            o += [f'v_add_u32 v15, {4*q}, v10', 'v_and_b32 v16, 7, v15', 'v_xor_b32 v16, v16, v14', 'v_lshlrev_b32 v16, 1, v16',
                  'v_or_b32 v16, v16, v11', 'v_lshlrev_b32 v16, 4, v16', 'v_lshlrev_b32 v15, 12, v15', 'v_add_u32 v15, v15, v16',
                  f'v_subrev_u32 v15, {1024*q}, v15',
                  f'buffer_load_dwordx4 v15, s[24:27], s50 offen offset:{1024*q}{sc1} lds']
        return o if do_dma else [x for x in o if not x.startswith('buffer')]
    for i in range(NST):
        if i + NS < NST:
            e.extend(dma(i+NS))
            e(f's_waitcnt vmcnt({NL*(NS-2)})')
        else:
            rem = NST - 1 - (i + 2)
            if i == NST - 4:
                if do_epi: e.extend(epi_loads())
            extra = 8 if (i >= NST - 4 and do_dma and do_epi) else 0
            if rem >= 0: e(f's_waitcnt vmcnt({NL*rem+extra})')
        if i == NST - 1: e('s_waitcnt vmcnt(0)')
        e('s_barrier')
    e('s_barrier')
    e.label('L_end_%s' % name)
    return kernel(name, e.text(), 256, 160)
```

```python
from asmlib import *
from gen_g1 import WS_H, WS_UR, WS_ZT, WS_ST, WS_CS, WS_FL, WS_TM, UR_PITCH, stamp, f2u

def wave_sum_dpp(regs):
    o = []
    steps = ['row_shr:1', 'row_shr:2', 'row_shr:4', 'row_shr:8']
    for s in steps:
        for r in regs: o.append(f'v_add_f32_dpp v{r}, v{r}, v{r} {s} row_mask:0xf bank_mask:0xf bound_ctrl:1')
        o.append('s_nop 1')
    for r in regs: o.append(f'v_add_f32_dpp v{r}, v{r}, v{r} row_bcast:15 row_mask:0xa bank_mask:0xf')
    o.append('s_nop 1')
    for r in regs: o.append(f'v_add_f32_dpp v{r}, v{r}, v{r} row_bcast:31 row_mask:0xc bank_mask:0xf')
    o.append('s_nop 1')
    return o

def prep_stats(e, swg, sw, sc1=''):
    e(f's_lshl_b32 s50, {swg}, 3'); e(f's_lshl_b32 s51, {sw}, 1'); e('s_add_u32 s76, s50, s51')
    e('s_lshl_b32 s51, s76, 11')
    e('v_lshlrev_b32 v2, 4, v1')
    for rr in range(2):
        e(f'buffer_load_dwordx4 v[{8+8*rr}:{11+8*rr}], v2, s[16:19], s51 offen offset:{2048*rr}')
        e(f'buffer_load_dwordx4 v[{12+8*rr}:{15+8*rr}], v2, s[16:19], s51 offen offset:{2048*rr+1024}')
    return
def prep_stats2(e, sc1=''):
    for rr in range(2):
        for d in range(8):
            e(f'v_lshlrev_b32 v{24+16*rr+2*d}, 16, v{8+8*rr+d}')
            e(f'v_and_b32 v{25+16*rr+2*d}, 0xffff0000, v{8+8*rr+d}')
    for rr in range(2):
        b = 24+16*rr
        e(f'v_add_f32 v{56+rr}, v{b}, v{b+1}')
        for i in range(2, 16): e(f'v_add_f32 v{56+rr}, v{56+rr}, v{b+i}')
    e('s_nop 1')
    e.extend(wave_sum_dpp([56, 57]))
    e('v_readlane_b32 s52, v56, 63'); e('v_readlane_b32 s53, v57, 63')
    e('s_nop 1')
    e('v_mov_b32 v58, 0x3a800000')
    e('v_mul_f32 v56, s52, v58'); e('v_mul_f32 v57, s53, v58')
    for rr in range(2):
        b = 24+16*rr
        for i in range(16): e(f'v_sub_f32 v{b+i}, v{b+i}, v{56+rr}')
        e(f'v_mul_f32 v{59+rr}, v{b}, v{b}')
        for i in range(1, 16): e(f'v_fmac_f32 v{59+rr}, v{b+i}, v{b+i}')
    e('s_nop 1')
    e.extend(wave_sum_dpp([59, 60]))
    e('v_readlane_b32 s52, v59, 63'); e('v_readlane_b32 s53, v60, 63')
    e('s_nop 1')
    e('v_mul_f32 v59, s52, v58'); e('v_mul_f32 v60, s53, v58')
    e('v_mov_b32 v61, 0x%x' % f2u(1e-5))
    for rr in range(2):
        o = 64 + 4*rr
        e(f'v_add_f32 v62, v{59+rr}, v61'); e('v_rsq_f32 v62, v62'); e('s_nop 0')
        e(f'v_mul_f32 v63, v62, v62'); e(f'v_mul_f32 v63, v63, v{59+rr}')
        e('v_add_f32 v63, v63, v61'); e('v_rsq_f32 v63, v63'); e('s_nop 0')
        e(f'v_mov_b32 v{o}, v{56+rr}'); e(f'v_mov_b32 v{o+1}, v62')
        e(f'v_mul_f32 v{o+2}, v62, v63'); e(f'v_mul_f32 v{o+3}, v{o+2}, v{56+rr}')
    e('v_cmp_eq_u32 vcc, 1, v1'); e('s_nop 1')
    for i in range(4): e(f'v_cndmask_b32 v{64+i}, v{64+i}, v{68+i}, vcc')
    e('v_add_u32 v62, s76, v1'); e('v_lshlrev_b32 v62, 4, v62'); e(f'v_add_u32 v62, {WS_ST}, v62')
    e('v_cmp_gt_u32 vcc, 2, v1')
    e('s_and_saveexec_b64 s[54:55], vcc')
    e(f'buffer_store_dwordx4 v[64:67], v62, s[24:27], 0 offen{sc1}')
    e('s_mov_b64 exec, s[54:55]')


def prep_cs_dma(e, swg, sw, lds):
    e(f's_lshr_b32 s56, {swg}, 5'); e(f's_and_b32 s57, {swg}, 31')
    e('s_lshl_b32 s58, s56, 7'); e(f's_lshl_b32 s59, {sw}, 5'); e('s_add_u32 s58, s58, s59'); e('s_mul_i32 s58, s58, 7168')
    e('s_mul_i32 s59, s57, 224'); e('s_add_u32 s58, s58, s59')
    e(f's_mul_i32 s59, {sw}, 7168'); e(f's_add_u32 s59, s59, {lds}')
    for q in range(7):
        e(f'v_add_u32 v132, {64*q}, v1')
        e('v_mul_u32_u24 v133, 4682, v132'); e('v_lshrrev_b32 v133, 16, v133')
        e('v_mul_u32_u24 v134, 14, v133'); e('v_sub_u32 v132, v132, v134'); e('v_lshlrev_b32 v132, 4, v132')
        e('v_mul_u32_u24 v133, 7168, v133'); e('v_add_u32 v132, v132, v133')
        e(f's_add_u32 m0, s59, {1024*q}'); e('s_nop 0')
        e('buffer_load_dwordx4 v132, s[20:23], s58 offen lds')

def prep_cs_compute(e, sw, lds, sc1=''):
    e('v_and_b32 v72, 15, v1'); e('v_lshrrev_b32 v73, 4, v1')
    e('v_lshrrev_b32 v74, 2, v72'); e('v_lshlrev_b32 v75, 3, v73'); e('v_add_u32 v74, v74, v75')
    e('v_mul_u32_u24 v74, 224, v74'); e('v_and_b32 v75, 3, v72'); e('v_lshlrev_b32 v75, 3, v75'); e('v_add_u32 v74, v74, v75')
    e(f's_lshl_b32 s59, {sw}, 5'); e(f's_add_u32 s59, s59, {lds}'); e('v_add_u32 v74, s59, v74')
    for i in range(4): e(f'v_mov_b32 v{76+i}, 0x3f803f80')
    for fbi in range(2):
        for ks in range(4):
            for h in range(2):
                e(f'ds_read_b64_tr_b16 v[{80+16*fbi+4*ks+2*h}:{81+16*fbi+4*ks+2*h}], v74 offset:{fbi*128 + ks*32*224 + h*4*224}')
    e('s_waitcnt lgkmcnt(0)')
    for fbi in range(2):
        for ks in range(4):
            c = '0' if ks == 0 else f'v[{112+4*fbi}:{115+4*fbi}]'
            e(f'v_mfma_f32_16x16x32_bf16 v[{112+4*fbi}:{115+4*fbi}], v[{80+16*fbi+4*ks}:{83+16*fbi+4*ks}], v[76:79], {c}')
    e('s_mul_i32 s58, s56, 3584'); e('s_mul_i32 s59, s57, 112'); e('s_add_u32 s58, s58, s59')
    e(f's_lshl_b32 s59, {sw}, 4'); e('s_add_u32 s58, s58, s59'); e('s_lshl_b32 s58, s58, 2'); e(f's_add_u32 s58, s58, {WS_CS}')
    e('v_lshlrev_b32 v75, 4, v73')
    e('s_nop 7'); e('s_nop 7')
    e('v_cmp_eq_u32 vcc, 0, v72')
    e('s_and_saveexec_b64 s[54:55], vcc')
    e(f'buffer_store_dwordx4 v[112:115], v75, s[24:27], s58 offen{sc1}')
    lab = e.newlabel('L_cs')
    e(f's_cmp_eq_u32 {sw}, 3'); e(f's_cbranch_scc1 {lab}')
    e(f'buffer_store_dwordx4 v[116:119], v75, s[24:27], s58 offen offset:256{sc1}')
    e.label(lab)
    e('s_mov_b64 exec, s[54:55]')

def prep_kv_loads(e, swg, sw):
    e(f's_lshr_b32 s74, {swg}, 4'); e(f's_and_b32 s75, {swg}, 15')
    e('v_and_b32 v3, 7, v1'); e('v_lshrrev_b32 v4, 3, v1')
    e(f's_lshl_b32 s50, {sw}, 3'); e('v_add_u32 v4, s50, v4')
    e('v_lshlrev_b32 v5, 2, v4'); e('s_lshl_b32 s50, s74, 7'); e('v_add_u32 v5, s50, v5')
    e('v_lshlrev_b32 v6, 4, v3'); e('s_lshl_b32 s50, s75, 7'); e('v_add_u32 v6, s50, v6')
    e('v_lshlrev_b32 v5, 11, v5'); e('v_add_u32 v6, v5, v6')
    for i in range(7):
        d = (i - 3)*2048
        if d >= 0: e(f'v_add_u32 v7, {d}, v6')
        else: e(f'v_subrev_u32 v7, {-d}, v6')
        e(f'buffer_load_dwordx4 v[{72+4*i}:{75+4*i}], v7, s[36:39], 0 offen')
    for i in range(4):
        e(f'v_add_u32 v7, {i*2048}, v6')
        e(f'buffer_load_dwordx4 v[{100+4*i}:{103+4*i}], v7, s[40:43], 0 offen')
    e('v_lshlrev_b32 v7, 6, v3'); e('s_lshl_b32 s50, s75, 9'); e('v_add_u32 v7, s50, v7')
    for i in range(4):
        e(f'buffer_load_dwordx4 v[{116+4*i}:{119+4*i}], v7, s[44:47], 0 offen offset:{16*i}')

def prep_kv_compute(e, sw, lds):
    e('v_sub_u32 v5, 31, v4'); e('v_lshlrev_b32 v6, 1, v3'); e('v_xor_b32 v5, v5, v6'); e('v_lshlrev_b32 v5, 3, v5')
    e('v_lshlrev_b32 v6, 11, v3'); e('v_add_u32 v5, v5, v6'); e(f'v_add_u32 v5, {lds}, v5')
    for c2 in range(4):
        for i in range(7):
            e(f'v_lshlrev_b32 v{8+i}, 16, v{72+4*i+c2}'); e(f'v_and_b32 v{15+i}, 0xffff0000, v{72+4*i+c2}')
        for hh in range(2):
            b = 116 + 4*c2 + 2*hh
            e(f'v_lshlrev_b32 v{22+4*hh}, 16, v{b}'); e(f'v_and_b32 v{23+4*hh}, 0xffff0000, v{b}')
            e(f'v_lshlrev_b32 v{24+4*hh}, 16, v{b+1}'); e(f'v_and_b32 v{25+4*hh}, 0xffff0000, v{b+1}')
        for i in range(4):
            e(f'v_lshlrev_b32 v{30+i}, 16, v{100+4*i+c2}'); e(f'v_and_b32 v{34+i}, 0xffff0000, v{100+4*i+c2}')
        for hh in range(2):
            kb = 8 + 7*hh; sb = 22 + 4*hh; rb = 38 + 4*hh
            for i in range(4): e(f'v_mul_f32 v{rb+i}, v{kb+i}, v{sb+3}')
            for j in (2, 1, 0):
                for i in range(4): e(f'v_fmac_f32 v{rb+i}, v{kb+i+3-j}, v{sb+j}')
            for i in range(4): e(f'v_mul_f32 v{rb+i}, v{rb+i}, v{30+4*hh+i}')
        for hh in range(2):
            rb = 38 + 4*hh
            e(f'v_cvt_pk_bf16_f32 v{46+2*hh}, v{rb+3}, v{rb+2}'); e(f'v_cvt_pk_bf16_f32 v{47+2*hh}, v{rb+1}, v{rb}')
        for hh in range(2):
            e(f'ds_write_b64 v5, v[{46+2*hh}:{47+2*hh}] offset:{(2*c2+hh)*256}')

def prep_kv_store(e, sw, lds, sc1=''):
    e('v_lshrrev_b32 v3, 4, v1'); e('v_and_b32 v4, 15, v1')
    e(f's_lshl_b32 s50, {sw}, 4'); e('v_add_u32 v3, s50, v3')
    for q in range(4):
        e(f'v_add_u32 v5, {4*q}, v3'); e('v_lshrrev_b32 v6, 3, v5'); e('v_xor_b32 v6, v6, v4'); e('v_lshlrev_b32 v6, 4, v6')
        e('v_lshlrev_b32 v7, 8, v5'); e('v_add_u32 v6, v6, v7')
        e(f'ds_read_b128 v[{8+4*q}:{11+4*q}], v6 offset:{lds}')
    e('s_lshl_b32 s50, s75, 6'); e(f's_mul_i32 s50, s50, {UR_PITCH}'); e(f's_add_u32 s50, s50, {WS_UR + 3840}')
    e('s_lshl_b32 s51, s74, 8'); e('s_sub_u32 s50, s50, s51')
    e(f'v_mul_u32_u24 v5, {UR_PITCH}, v3'); e('v_lshlrev_b32 v6, 4, v4'); e('v_add_u32 v5, v5, v6')
    for q in range(4):
        e(f's_waitcnt lgkmcnt({3-q})')
        e(f's_add_u32 s51, s50, {4*q*UR_PITCH}')
        e(f'buffer_store_dwordx4 v[{8+4*q}:{11+4*q}], v5, s[24:27], s51 offen{sc1}')
    lab = e.newlabel('L_pad')
    e('s_cmp_lg_u32 s74, 0'); e(f's_cbranch_scc1 {lab}')
    e(f's_cmp_lg_u32 {sw}, 0'); e(f's_cbranch_scc1 {lab}')
    for i in range(4): e(f'v_mov_b32 v{24+i}, 0')
    e(f'v_mul_u32_u24 v5, {UR_PITCH}, v1')
    e('s_lshl_b32 s50, s75, 6'); e(f's_mul_i32 s50, s50, {UR_PITCH}'); e(f's_add_u32 s50, s50, {WS_UR + 4096}')
    e(f'buffer_store_dwordx4 v[24:27], v5, s[24:27], s50 offen{sc1}')
    e.label(lab)

def gen_prep(name='prep_kernel', stamps=True):
    e = Em()
    e('s_cmp_ge_u32 s2, 256')
    e('s_cbranch_scc1 L_end_%s' % name)
    e('s_load_dwordx2 s[4:5], s[0:1], 0')
    e('s_load_dwordx2 s[6:7], s[0:1], 56')
    e('s_load_dwordx2 s[8:9], s[0:1], 8')
    e('s_load_dwordx2 s[10:11], s[0:1], 104')
    e('s_load_dwordx2 s[12:13], s[0:1], 16')
    e('s_load_dwordx2 s[14:15], s[0:1], 24')
    e('v_lshrrev_b32 v1, 6, v0')
    e('s_nop 1')
    e('v_readfirstlane_b32 s34, v1')
    e('v_and_b32 v1, 63, v0')
    e('s_waitcnt lgkmcnt(0)')
    srd(e, 16, 4, 5, 2048*1024*2)
    srd(e, 20, 6, 7, 1024*3584*2)
    srd(e, 24, 10, 11, 0x10000000)
    srd(e, 36, 8, 9, 2048*1024*2)
    srd(e, 40, 12, 13, 2048*1024*2)
    srd(e, 44, 14, 15, 1024*4*2)
    e('s_lshl_b32 s94, s2, 3'); e('s_add_u32 s94, s94, s34'); e('s_lshl_b32 s94, s94, 7'); e(f's_add_u32 s94, s94, {WS_TM}')
    if stamps: stamp(e, 11)
    prep_stats(e, 's2', 's34')
    prep_kv_loads(e, 's2', 's34')
    prep_cs_dma(e, 's2', 's34', 16384)
    e('s_waitcnt vmcnt(22)')
    prep_stats2(e)
    e('s_waitcnt vmcnt(8)')
    prep_kv_compute(e, 's34', 0)
    e('s_waitcnt vmcnt(0) lgkmcnt(0)')
    e('s_barrier')
    prep_kv_store(e, 's34', 0)
    prep_cs_compute(e, 's34', 16384)
    e('s_waitcnt vmcnt(0)')
    if stamps: stamp(e, 12)
    e.label('L_end_%s' % name)
    return kernel(name, e.text(), 256, 160)
```

```python
import sys
from asmlib import HDR
from gen_g1 import gen_g1
from gen_g2 import gen_g2
from gen_prep import gen_prep
from gen_conv import gen_conv, CW

HEADER = open('parallel_sum__ssm_conv_h3__mixer_channel_mlp__prompt.s.ref').read().split('; Override launch')[0] \
    if False else None

def header_comments():
    L = []
    for line in open('ref_header.txt'): L.append(line.rstrip('\n'))
    return '\n'.join(L) + '\n'

def gen_list(stamps=False):
    P = 'mixer_'
    launches = [(P+'prep_kernel', 256, 46080), (P+'g1_kernel', 512, 163840), (P+'conv_kernel', 256, 4*CW), (P+'g2_kernel', 512, 163840)]
    asm = header_comments()
    for n, b, l in launches:
        asm += f'; @launch kernel={n} grid=(256,1,1) block=({b},1,1) lds={l}\n'
    asm += HDR
    asm += gen_prep(P+'prep_kernel', stamps=stamps) + gen_g1(name=P+'g1_kernel', stamps=stamps) + gen_conv(P+'conv_kernel', stamps=stamps) + gen_g2(name=P+'g2_kernel', stamps=stamps)
    return asm, launches

if __name__ == '__main__':
    asm, _ = gen_list(stamps=False)
    out = sys.argv[1] if len(sys.argv) > 1 else 'v1.s'
    open(out, 'w').write(asm)
    print(len(asm))
```

```python
from asmlib import *

WS_H   = 0x0000000
WS_UR  = 0x1000000
WS_ZT  = 0x1500000
WS_ST  = 0x1A00000
WS_CS  = 0x1A10000
WS_FL  = 0x1A40000
WS_TM  = 0x1B00000
UR_PITCH = 4224

import struct, math
def f2u(x): return struct.unpack('<I', struct.pack('<f', x))[0]
C0 = -2.0 * math.sqrt(2.0 / math.pi) * math.log2(math.e)
C1 = C0 * 0.044715

def stamp(e, slot, swave='s34', tmp_v=('v150','v151'), srd_ws='s[24:27]'):
    e(f's_memtime s[90:91]')
    e(f's_memrealtime s[92:93]')
    e('s_waitcnt lgkmcnt(0)')
    e(f'v_mov_b32 {tmp_v[0]}, s90')
    e(f'v_mov_b32 {tmp_v[1]}, s92')
    a, b = int(tmp_v[0][1:]), int(tmp_v[1][1:])
    assert b == a + 1
    e(f'v_mov_b32 v{a+2}, s94')
    e(f'buffer_store_dwordx2 v[{a}:{b}], v{a+2}, {srd_ws}, 0 offen offset:{slot*8}')

def gen_g1(mode='spec', name='g1_kernel', do_mfma=True, do_dma=True, do_epi=True, stamps=True, prio=False, pf=0):
    e = Em()
    spec = (mode == 'spec')
    WB = 0; XB = 86016; CSB = 151552
    e('s_cmp_ge_u32 s2, 256')
    e('s_cbranch_scc1 L_end_%s' % name)
    e('s_load_dwordx2 s[4:5], s[0:1], 0')
    e('s_load_dwordx2 s[6:7], s[0:1], 56')
    e('s_load_dwordx2 s[8:9], s[0:1], 64')
    e('s_load_dwordx2 s[10:11], s[0:1], 104')
    e('v_lshrrev_b32 v1, 6, v0')
    e('s_nop 1')
    e('v_readfirstlane_b32 s34, v1')
    e('v_and_b32 v1, 63, v0')
    e('s_and_b32 s35, s2, 7')
    e('s_lshr_b32 s36, s2, 3')
    e('s_and_b32 s32, s35, 1'); e('s_lshl_b32 s32, s32, 3'); e('s_and_b32 s37, s36, 7'); e('s_add_u32 s32, s32, s37')
    e('s_lshr_b32 s33, s35, 1'); e('s_lshl_b32 s33, s33, 2'); e('s_lshr_b32 s37, s36, 3'); e('s_add_u32 s33, s33, s37')
    e('s_waitcnt lgkmcnt(0)')
    srd(e, 16, 4, 5, 2048*1024*2)
    srd(e, 20, 6, 7, 1024*3584*2)
    srd(e, 24, 10, 11, 0x10000000)
    srd(e, 28, 8, 9, 3584*2)
    e('s_lshl_b32 s94, s2, 3'); e('s_add_u32 s94, s94, s34'); e('s_lshl_b32 s94, s94, 7'); e(f's_add_u32 s94, s94, {WS_TM}')
    if stamps: stamp(e, 0)
    if spec:
        e('s_sub_u32 s38, s34, 4')
    else:
        e('s_mov_b32 s38, s34')
    def loader_setup():
        b = LB
        e(f'v_lshrrev_b32 v{b+11}, 3, v1')
        e(f'v_and_b32 v{b+12}, 7, v1')
        e(f'v_xor_b32 v{b+12}, v{b+12}, v{b+11}')
        e(f'v_lshlrev_b32 v{b+12}, 4, v{b+12}')
        e(f's_lshl_b32 s39, s38, 5')
        e(f'v_add_u32 v{b+11}, s39, v{b+11}')
        e(f'v_lshlrev_b32 v{b+11}, 11, v{b+11}')
        e(f'v_add_u32 v{b}, v{b+11}, v{b+12}')
        for q in range(1, 4):
            e(f'v_add_u32 v{b+q}, {q*(16384-1024)}, v{b}')
        for q in range(7):
            e(f'v_add_u32 v{b+11}, {64*q}, v1')
            e(f'v_mul_u32_u24 v{b+12}, 2341, v{b+11}')
            e(f'v_lshrrev_b32 v{b+12}, 16, v{b+12}')
            e(f'v_mul_u32_u24 v{b+13}, 28, v{b+12}')
            e(f'v_sub_u32 v{b+11}, v{b+11}, v{b+13}')
            e(f'v_lshrrev_b32 v{b+13}, 3, v{b+12}')
            e(f'v_lshlrev_b32 v{b+13}, 1, v{b+13}')
            e(f'v_xor_b32 v{b+11}, v{b+11}, v{b+13}')
            e(f'v_lshlrev_b32 v{b+11}, 4, v{b+11}')
            e(f'v_mul_u32_u24 v{b+12}, 7168, v{b+12}')
            e(f'v_add_u32 v{b+11}, v{b+11}, v{b+12}')
            imm = 1024 * (q % 4)
            e(f'v_subrev_u32 v{b+4+q}, {imm}, v{b+11}')
        e('s_lshl_b32 s40, s32, 18')
        e('s_lshl_b32 s41, s38, 12'); e(f's_add_u32 s41, s41, {XB}')
        e('s_lshr_b32 s42, s38, 1')
        e('s_and_b32 s43, s38, 1')
        e('s_mul_i32 s44, s33, 448')
        e('s_mul_i32 s45, s43, %d' % (16*7168)); e('s_add_u32 s44, s44, s45')
        e('s_mul_i32 s45, s42, %d' % (32*7168)); e('s_sub_u32 s44, s44, s45')
        e('s_mul_i32 s45, s42, %d' % (5*14336))
        e('s_mul_i32 s46, s43, 7168'); e('s_add_u32 s45, s45, s46'); e(f's_add_u32 s45, s45, {WB}')
    def dma_x(stage):
        b = LB
        out = [f's_add_u32 m0, s41, {(stage % 4)*16384}', f's_add_u32 s47, s40, {stage*128}']
        for q in range(4):
            out.append(f'buffer_load_dwordx4 v{b+q}, s[16:19], s47 offen offset:{1024*q} lds')
        return out
    def dma_w():
        b = LB
        out = ['s_mov_b32 m0, s45', 's_nop 0']
        for q in range(4):
            out.append(f'buffer_load_dwordx4 v{b+4+q}, s[20:23], s44 offen offset:{1024*q} lds')
        out += ['s_add_u32 m0, s45, 4096', 's_nop 0']
        for q in range(4, 7):
            out.append(f'buffer_load_dwordx4 v{b+4+q}, s[20:23], s44 offen offset:{1024*(q-4)} lds')
        return out
    def adv_w():
        return [f's_add_u32 s44, s44, {64*7168}', 's_add_u32 s45, s45, 28672',
                f's_cmp_ge_u32 s45, {WB+86016}', f's_cselect_b32 s46, 86016, 0', 's_sub_u32 s45, s45, s46']
    nodma = lambda l: l if do_dma else [x for x in l if not x.startswith('buffer_load')]

    ACC = 16
    def acc(fb, sb): return ACC + (fb*4 + sb)*4
    def XF(st, sb): return st*16 + sb*4
    def WF(st, fb): return 32 + st*28 + fb*4
    def reads(t):
        st = t & 1; stage = t >> 1; ks = t & 1
        xs = stage % 4; wsl = t % 6
        out = []
        xr = [f'ds_read_b128 a[{XF(st,sb)}:{XF(st,sb)+3}], v{2+ks} offset:{xs*16384+sb*2048}' for sb in range(4)]
        wr = []
        for fb in range(7):
            for h in range(2):
                base = 4 + (fb & 1) + 2*(wsl >= 3)
                wr.append(f'ds_read_b64_tr_b16 a[{WF(st,fb)+2*h}:{WF(st,fb)+2*h+1}], v{base} offset:{(wsl%3)*14336+32*fb+1792*h}')
        return wr[:2] + xr + wr[2:]
    def mfmas(t):
        st = t & 1
        out = []
        for fb in range(7):
            for sb in range(4):
                c = '0' if t == 0 else f'v[{acc(fb,sb)}:{acc(fb,sb)+3}]'
                out.append(f'v_mfma_f32_16x16x32_bf16 v[{acc(fb,sb)}:{acc(fb,sb)+3}], a[{WF(st,fb)}:{WF(st,fb)+3}], a[{XF(st,sb)}:{XF(st,sb)+3}], {c}')
        return out if do_mfma else ['s_nop 0'] * 2
    def consumer_setup():
        e('s_and_b32 s48, s34, 1'); e('s_lshr_b32 s49, s34, 1'); e('s_and_b32 s49, s49, 1')
        e('v_and_b32 v8, 15, v1')
        e('v_lshrrev_b32 v9, 4, v1')
        e('s_lshl_b32 s50, s48, 6')
        e('v_add_u32 v10, s50, v8')
        e('v_lshlrev_b32 v10, 7, v10')
        e('v_and_b32 v11, 7, v8')
        e('v_xor_b32 v12, v9, v11')
        e('v_lshlrev_b32 v12, 4, v12')
        e('v_add_u32 v2, v10, v12'); e(f'v_add_u32 v2, {XB}, v2')
        e('v_xor_b32 v3, 64, v2')
        e('v_lshrrev_b32 v10, 2, v8')
        e('v_lshlrev_b32 v11, 3, v9')
        e('v_add_u32 v10, v10, v11')
        e('v_mul_u32_u24 v10, 448, v10')
        e('v_and_b32 v11, 3, v8'); e('v_lshlrev_b32 v11, 3, v11')
        e('v_add_u32 v10, v10, v11')
        e('s_mul_i32 s50, s49, 224'); e(f's_add_u32 s50, s50, {WB}')
        e('v_add_u32 v10, s50, v10')
        e('v_and_b32 v11, 1, v9'); e('v_lshlrev_b32 v11, 5, v11')
        e('v_add_u32 v12, v10, v11')
        e('v_sub_u32 v13, v10, v11')
        e('s_cmp_eq_u32 s49, 0'); e('s_cselect_b64 vcc, -1, 0')
        e('v_cndmask_b32 v4, v13, v12, vcc')
        e('v_cndmask_b32 v5, v12, v13, vcc')
        e(f'v_add_u32 v6, {3*14336}, v4'); e(f'v_add_u32 v7, {3*14336}, v5')

    def epilogue():
        e('v_and_b32 v128, 15, v1')
        e('s_lshl_b32 s50, s32, 7'); e('s_lshl_b32 s51, s48, 6'); e('s_add_u32 s50, s50, s51')
        e('v_add_u32 v128, s50, v128'); e('v_lshlrev_b32 v128, 4, v128'); e(f'v_add_u32 v128, {WS_ST+8}, v128')
        for sb in range(4):
            e(f'buffer_load_dwordx2 v[{8+2*sb}:{9+2*sb}], v128, s[24:27], 0 offen offset:{sb*256}')
        e('v_lshrrev_b32 v129, 4, v1'); e('v_lshlrev_b32 v129, 4, v129')
        e('s_mul_i32 s50, s49, 448'); e(f's_add_u32 s50, s50, {CSB}')
        e('v_add_u32 v129, s50, v129')
        e('s_lshl_b32 s50, s32, 3'); e('s_lshl_b32 s51, s48, 2'); e('s_add_u32 s50, s50, s51')
        e('s_mul_i32 s50, s50, %d' % (112*1024))
        e('s_mul_i32 s51, s33, %d' % (7*1024)); e('s_add_u32 s50, s50, s51')
        e(f's_add_u32 s50, s50, {WS_H}')
        e('v_lshlrev_b32 v130, 4, v1')
        e('s_mov_b32 s52, 0x%x' % f2u(C1)); e('v_mov_b32 v131, 0x%x' % f2u(C0))
        e('s_waitcnt vmcnt(0)')
        T = 144
        def gelu_block(fb, sb, outreg):
            a = acc(fb, sb); R = 8 + 2*sb; Rm = R + 1
            rr = range(4)
            o = []
            for r in rr: o.append(f'v_fma_f32 v{T+r}, -v{Rm}, v{132+r}, v{136+r}')
            for r in rr: o.append(f'v_fma_f32 v{a+r}, v{R}, v{a+r}, v{T+r}')
            for r in rr: o.append(f'v_mul_f32 v{T+r}, v{a+r}, v{a+r}')
            for r in rr: o.append(f'v_fma_f32 v{T+r}, v{T+r}, s52, v131')
            for r in rr: o.append(f'v_mul_f32 v{T+r}, v{T+r}, v{a+r}')
            for r in rr: o.append(f'v_exp_f32 v{T+r}, v{T+r}')
            for r in rr: o.append(f'v_add_f32 v{T+r}, 1.0, v{T+r}')
            for r in rr: o.append(f'v_rcp_f32 v{T+r}, v{T+r}')
            for r in rr: o.append(f'v_mul_f32 v{a+r}, v{a+r}, v{T+r}')
            o.append(f'v_cvt_pk_bf16_f32 v{outreg}, v{a}, v{a+1}')
            o.append(f'v_cvt_pk_bf16_f32 v{outreg+1}, v{a+2}, v{a+3}')
            return o
        lab1 = e.newlabel('L_wn1'); labj = e.newlabel('L_wnj')
        e('s_cmp_eq_u32 s49, 1'); e(f's_cbranch_scc1 {lab1}')
        for wn in range(2):
            if wn == 1: e.label(lab1)
            for fb in range(7):
                lb = 7*wn + fb
                pair = lb >> 1; half = lb & 1
                e(f'ds_read_b128 v[132:135], v129 offset:{fb*64}')
                e(f'ds_read_b128 v[136:139], v129 offset:{fb*64+896}')
                e('s_waitcnt lgkmcnt(0)')
                for sb in range(4):
                    single = (lb == 6 or lb == 7)
                    if single:
                        o = 152 + (sb & 1)*4
                        e.extend(gelu_block(fb, sb, o))
                        e(f's_add_u32 s53, s50, {sb*112*1024 + pair*1024}')
                        e(f'buffer_store_dwordx2 v[{o}:{o+1}], v130, s[24:27], s53 offen offset:{8*half}')
                    elif half == 0:
                        a = acc(fb, sb)
                        e.extend(gelu_block(fb, sb, a))
                    else:
                        a0 = acc(fb-1, sb)
                        e.extend(gelu_block(fb, sb, a0+2))
                        e(f's_add_u32 s53, s50, {sb*112*1024 + pair*1024}')
                        e(f'buffer_store_dwordx4 v[{a0}:{a0+3}], v130, s[24:27], s53 offen')
            if wn == 0: e(f's_branch {labj}')
        e.label(labj)

    LB = 100 if spec else 200
    if spec:
        labL = 'L_loader_%s' % name
        e('s_cmp_ge_u32 s34, 4'); e(f's_cbranch_scc1 {labL}')
        if prio: e('s_setprio 1')
        consumer_setup()
        if pf:
            e('s_load_dwordx2 s[60:61], s[0:1], 72'); e('s_load_dwordx2 s[62:63], s[0:1], 32')
            e('s_waitcnt lgkmcnt(0)')
            srd(e, 64, 60, 61, 3584*1024*2); srd(e, 68, 62, 63, 1024*2048*2)
            e(f'v_mul_u32_u24 v140, {pf}, v1')
            per = 64*pf
            e('s_mul_i32 s72, s2, 28672'); e(f's_mul_i32 s73, s34, {7168}'); e('s_add_u32 s72, s72, s73')
            for q in range((7168 + per - 1)//per):
                e(f's_add_u32 s73, s72, {q*per}')
                e('buffer_load_dword v141, v140, s[64:67], s73 offen')
            e('s_mul_i32 s72, s2, 16384'); e(f's_mul_i32 s73, s34, {4096}'); e('s_add_u32 s72, s72, s73')
            for q in range((4096 + per - 1)//per):
                e(f's_add_u32 s73, s72, {q*per}')
                e('buffer_load_dword v141, v140, s[68:71], s73 offen')
        e('s_barrier')
        e.extend(reads(0)); e('s_waitcnt lgkmcnt(0)')
        if stamps: stamp(e, 1)
        for i in range(16):
            e('s_barrier')
            for t in (2*i, 2*i+1):
                rd = reads(t+1) if t+1 < 32 else []
                e.extend(interleave(mfmas(t), rd))
                e('s_waitcnt lgkmcnt(0)')
        e('s_barrier')
        if stamps: stamp(e, 2)
        if do_epi: epilogue()
        e('s_waitcnt vmcnt(0)')
        if stamps: stamp(e, 3)
        e('s_branch L_end_%s' % name)
        e.label(labL)
        loader_setup()
        labskip = e.newlabel('L_skip')
        e.extend(nodma(dma_x(0)))
        e('s_cmp_eq_u32 s42, 1'); e(f's_cbranch_scc1 {labskip}')
        e.extend(nodma(dma_w())); e.label(labskip); e.extend(adv_w())
        e.extend(nodma(dma_x(1))); e.extend(nodma(dma_w())); e.extend(adv_w())
        e.extend(nodma(dma_x(2))); e.extend(nodma(dma_w())); e.extend(adv_w())
        e('s_waitcnt vmcnt(11)')
        e('s_barrier')
        e('s_barrier')
        for i in range(16):
            if i <= 12:
                e.extend(nodma(dma_x(i+3))); e.extend(nodma(dma_w())); e.extend(adv_w())
                e('s_waitcnt vmcnt(11)')
            elif i == 13:
                lab = e.newlabel('L_skip')
                e('s_cmp_eq_u32 s42, 0'); e(f's_cbranch_scc1 {lab}')
                e.extend(nodma(dma_w())); e('s_waitcnt vmcnt(7)');
                lab2 = e.newlabel('L_j'); e(f's_branch {lab2}')
                e.label(lab); e('s_waitcnt vmcnt(0)'); e.label(lab2)
            elif i == 14:
                e('s_waitcnt vmcnt(0)')
                e('s_lshl_b32 s50, s38, 6'); e('v_add_u32 v20, s50, v1')
                e('s_mul_i32 s51, s33, 224'); e('v_add_u32 v21, s51, v20')
                e('v_lshlrev_b32 v22, 2, v21'); e(f'v_add_u32 v22, {WS_CS}, v22')
                for p in range(8):
                    e(f's_mov_b32 s53, {p*3584*4}')
                    e(f'buffer_load_dword v{24+p}, v22, s[24:27], s53 offen')
                e('v_lshlrev_b32 v23, 1, v21')
                e('buffer_load_ushort v32, v23, s[28:31], 0 offen')
            elif i == 15:
                e('s_waitcnt vmcnt(0)')
                for p in range(1, 8): e(f'v_add_f32 v24, v24, v{24+p}')
                e('v_lshlrev_b32 v32, 16, v32')
                e('v_lshlrev_b32 v20, 2, v20'); e(f'v_add_u32 v20, {CSB}, v20')
                e('v_cmp_gt_u32 vcc, 0x%x, v20' % (CSB + 896))
                e('s_and_saveexec_b64 s[54:55], vcc')
                lab = e.newlabel('L_x'); e(f's_cbranch_execz {lab}')
                e('ds_write_b32 v20, v24'); e('ds_write_b32 v20, v32 offset:896')
                e.label(lab); e('s_mov_b64 exec, s[54:55]')
                e('s_waitcnt lgkmcnt(0)')
            e('s_barrier')
        if stamps: stamp(e, 2)
    else:
        raise NotImplementedError
    e.label('L_end_%s' % name)
    return kernel(name, e.text(), 256, 160)

if __name__ == '__main__':
    t = gen_g1()
    print(len(t.split('\n')))
```

```python
import sys
from asmlib import HDR
from gen_g1 import gen_g1
from gen_g2 import gen_g2
from gen_prep import gen_prep
from gen_conv import gen_conv, CW

HEADER = open('parallel_sum__ssm_conv_h3__mixer_channel_mlp__prompt.s.ref').read().split('; Override launch')[0] \
    if False else None

def header_comments():
    L = []
    for line in open('ref_header.txt'): L.append(line.rstrip('\n'))
    return '\n'.join(L) + '\n'

def gen_list(stamps=False, pf=0):
    P = 'mixer_'
    launches = [(P+'prep_kernel', 256, 46080), (P+'g1_kernel', 512, 163840), (P+'conv_kernel', 256, 4*CW), (P+'g2_kernel', 512, 163840)]
    asm = header_comments()
    for n, b, l in launches:
        asm += f'; @launch kernel={n} grid=(256,1,1) block=({b},1,1) lds={l}\n'
    asm += HDR
    asm += gen_prep(P+'prep_kernel', stamps=stamps) + gen_g1(name=P+'g1_kernel', stamps=stamps, pf=pf) + gen_conv(P+'conv_kernel', stamps=stamps) + gen_g2(name=P+'g2_kernel', stamps=stamps)
    return asm, launches

if __name__ == '__main__':
    pf = int(sys.argv[2]) if len(sys.argv) > 2 else 0
    asm, _ = gen_list(stamps=False, pf=pf)
    out = sys.argv[1] if len(sys.argv) > 1 else 'v1.s'
    open(out, 'w').write(asm)
    print(len(asm))
```

```python
from asmlib import *
import struct, math

def f2u(x): return struct.unpack('<I', struct.pack('<f', x))[0]
C0 = -2.0 * math.sqrt(2.0 / math.pi) * math.log2(math.e)
C1 = C0 * 0.044715

WS_H   = 0x0000000
WS_UR  = 0x1000000
WS_ZT  = 0x1500000
WS_ST  = 0x1A00000
WS_CS  = 0x1A10000
WS_FL  = 0x1A60000
WS_TM  = 0x1B00000
WS_XP  = 0x1C00000
WS_Y2  = 0x2400000
UR_PITCH = 4224
FL_CF = 0x800
FL_YF, FL_UF, FL_HF, FL_ZF, FL_XF, FL_EP = 0x0, 0x400, 0x1000, 0x2000, 0x3000, 0x8000
S_NONCE = 97

S_WG, S_WAVE, S_W4, S_MT1, S_NT1, S_MT2, S_NT2 = 2, 4, 5, 6, 7, 8, 9
SRD_X, SRD_W1, SRD_WS, SRD_A, SRD_B, SRD_C, SRD_D = 16, 20, 24, 28, 32, 36, 40
P_X, P_K, P_V, P_SK, P_SSM, P_D, P_BX, P_W1 = 64, 66, 68, 70, 72, 74, 76, 78
P_B1, P_W2, P_B2, P_OUT = 80, 82, 84, 86
P_DBG, P_WS = 88, 90
S_STB = 96

def ssrd(d): return f's[{d}:{d+3}]'
def mk_srd(e, d, p, nbytes): srd(e, d, p, p+1, nbytes)

def stamp(e, slot, vt=156):
    e('s_memtime s[92:93]'); e('s_memrealtime s[94:95]'); e('s_waitcnt lgkmcnt(0)')
    e(f'v_mov_b32 v{vt}, s92'); e(f'v_mov_b32 v{vt+1}, s94'); e(f'v_mov_b32 v{vt+2}, s{S_STB}')
    e(f'buffer_store_dwordx2 v[{vt}:{vt+1}], v{vt+2}, {ssrd(SRD_WS)}, 0 offen offset:{slot*8}')

class VQ:
    def __init__(self): self.q = []
    def issue(self, tag, n=1): self.q += [tag]*n
    def count_after(self, tags):
        last = -1
        for i, t in enumerate(self.q):
            if t in tags: last = i
        return len(self.q) - 1 - last
    def wait(self, e, tags):
        if isinstance(tags, str): tags = [tags]
        if not any(t in tags for t in self.q): return
        n = self.count_after(tags)
        assert n <= 63, n
        e(f's_waitcnt vmcnt({n})')
        self.q = self.q[len(self.q)-n:] if n else []
    def wait_all(self, e):
        e('s_waitcnt vmcnt(0)'); self.q = []

def poll_flags(e, srd_reg, voff, soff, expect, vtmp, nlanes=64, lab_prefix='L_poll'):
    lab = e.newlabel(lab_prefix); labx = e.newlabel(lab_prefix + 'x')
    e('s_mov_b32 s14, 0x200000')
    e.label(lab)
    e(f'buffer_load_dword v{vtmp}, v{voff}, {ssrd(srd_reg)}, {soff} offen sc1')
    e('s_waitcnt vmcnt(0)')
    e(f'v_cmp_ne_u32 vcc, {expect}, v{vtmp}')
    e('s_sub_u32 s14, s14, 1')
    e('s_cmp_eq_u32 s14, 0'); e(f's_cbranch_scc1 {labx}')
    e(f's_cbranch_vccz {labx}')
    e('s_sleep 1')
    e(f's_branch {lab}')
    e.label(labx)

def check_or_poll(e, srd_reg, voff, soff, expect, vtmp):
    skip = e.newlabel('L_ok')
    e(f'v_cmp_ne_u32 vcc, {expect}, v{vtmp}')
    e('s_nop 0')
    e(f's_cbranch_vccz {skip}')
    poll_flags(e, srd_reg, voff, soff, expect, vtmp)
    e.label(skip)

def tick(e, idx, vreg=159):
    e('s_memtime s[92:93]'); e('s_memrealtime s[94:95]'); e('s_waitcnt lgkmcnt(0)')
    e(f'v_writelane_b32 v{vreg}, s92, {idx}'); e(f'v_writelane_b32 v{vreg-1}, s94, {idx}')
def tick_dump(e, vreg=159):
    e(f's_lshl_b32 s10, s{S_WG}, 3'); e(f's_add_u32 s10, s10, s{S_WAVE}'); e('s_lshl_b32 s10, s10, 9'); e(f's_add_u32 s10, s10, {WS_TM + 0x100000}')
    e('v_lshlrev_b32 v154, 3, v1')
    e(f'v_mov_b32 v156, v{vreg}'); e(f'v_mov_b32 v157, v{vreg-1}')
    e(f'buffer_store_dwordx2 v[156:157], v154, {ssrd(SRD_WS)}, s10 offen')
```

```python
from fz_common import *
CP = 4160; HOFF = 4*CP; CW = HOFF + 512 + 4096
CWB0 = 73728

def base(e):
    e(f's_lshl_b32 s56, s{S_WG}, 2'); e(f's_add_u32 s56, s56, s{S_W4}')
    e(f's_mul_i32 s57, s{S_W4}, {CW}'); e(f's_add_u32 s57, s57, {CWB0}')
    mk_srd(e, SRD_A, P_SSM, 1024*2048*2); mk_srd(e, SRD_B, P_D, 1024*2)

def setup(e, vq):
    e('v_lshlrev_b32 v2, 4, v1')
    e('v_mov_b32 v4, 0'); e('v_mov_b32 v5, 0')
    e('v_lshlrev_b32 v3, 3, v1'); e('v_add_u32 v3, s57, v3')
    e(f'ds_write_b64 v3, v[4:5] offset:{HOFF}')
    e('v_lshrrev_b32 v6, 3, v1'); e('v_and_b32 v6, 3, v6'); e(f'v_mul_u32_u24 v6, {CP}, v6')
    e('v_and_b32 v7, 7, v1'); e('v_lshlrev_b32 v7, 3, v7'); e('v_add_u32 v6, v6, v7'); e('v_add_u32 v6, s57, v6')
    e('ds_write_b64 v6, v[4:5] offset:4096')
    e(f's_add_u32 m0, s57, {HOFF+512}'); e('s_lshl_b32 s10, s56, 12')
    for q in range(4): e(f'buffer_load_dwordx4 v2, {ssrd(SRD_A)}, s10 offen offset:{1024*q} nt lds')
    e(f's_mul_i32 s58, s56, {UR_PITCH}'); e(f's_add_u32 s58, s58, {WS_UR}')
    for c in (0, 2, 1, 3):
        e(f's_add_u32 m0, s57, {c*CP}'); e(f's_add_u32 s10, s58, {2*c}')
        for q in range(4): e(f'buffer_load_dwordx4 v2, {ssrd(SRD_WS)}, s10 offen offset:{1024*q} sc1 lds')
    e('s_lshl_b32 s10, s56, 1'); e('v_mov_b32 v12, s10')
    e(f'buffer_load_ushort v13, v12, {ssrd(SRD_B)}, 0 offen')
    vq.issue('cv', 21)

def compute(e, vq, st=lambda n: None):
    e('v_and_b32 v8, 15, v1'); e('v_lshrrev_b32 v9, 4, v1')
    e('v_sub_u32 v10, 3, v8'); e('v_and_b32 v10, 3, v10'); e(f'v_mul_u32_u24 v10, {CP}, v10')
    e('v_sub_u32 v11, 2047, v8'); e('v_and_b32 v11, 0xfffffffc, v11')
    e('v_lshlrev_b32 v12, 3, v9'); e('v_add_u32 v11, v11, v12')
    e(f'v_subrev_u32 v11, {32*63+16}, v11'); e('v_lshlrev_b32 v11, 1, v11')
    e('v_add_u32 v10, v10, v11'); e('v_add_u32 v10, s57, v10')
    e('v_lshlrev_b32 v11, 4, v8'); e('v_lshlrev_b32 v12, 3, v9'); e('v_add_u32 v11, v11, v12')
    e('v_lshlrev_b32 v11, 1, v11'); e(f'v_add_u32 v11, {HOFF+512-480}, v11'); e('v_add_u32 v11, s57, v11')
    ACC = 16
    def AF(st, p): return ('a', st*32 + p*4)
    def BF(st, m): return ('a', 64 + m*4) if st == 0 else ('v', 64 + m*4)
    def rg(t, n): return f'{t[0]}[{t[1]}:{t[1]+n-1}]'
    def reads(q):
        st = q & 1; out = []
        for p in range(8):
            j = 8*p + q; a = AF(st, p); off = 64*(63 - j)
            out.append(f'ds_read_b64 {a[0]}[{a[1]}:{a[1]+1}], v10 offset:{off}')
            out.append(f'ds_read_b64 {a[0]}[{a[1]+2}:{a[1]+3}], v10 offset:{off+8}')
            out.append(f'ds_read_b128 {rg(BF(st, p),4)}, v11 offset:{512*p + 64*(7 - q)}')
        return out
    def mfmas(q):
        st = q & 1; out = []
        for p in range(8):
            for n in range(p, 8):
                c = '0' if (q == 0 and p == 0) else f'v[{ACC+4*n}:{ACC+4*n+3}]'
                out.append(f'v_mfma_f32_16x16x32_bf16 v[{ACC+4*n}:{ACC+4*n+3}], {rg(AF(st,p),4)}, {rg(BF(st,n-p),4)}, {c}')
        return out
    vq.wait_all(e); e('s_waitcnt lgkmcnt(0)')
    st(7)
    e.extend(reads(0)); e('s_waitcnt lgkmcnt(0)')
    for q in range(8):
        e.extend(interleave(mfmas(q), reads(q+1) if q < 7 else []))
        e('s_waitcnt lgkmcnt(0)')
    st(8)
    e('v_lshlrev_b32 v14, 4, v8'); e('v_lshlrev_b32 v15, 2, v9'); e('v_add_u32 v14, v14, v15')
    e('v_sub_u32 v15, %d, v14' % (2044 - 256*7)); e('v_lshlrev_b32 v15, 1, v15'); e('v_add_u32 v15, s57, v15')
    for n in range(8): e(f'ds_read_b64 v[{64+2*n}:{65+2*n}], v15 offset:{512*(7-n)}')
    e('v_lshlrev_b32 v13, 16, v13')
    e('v_and_b32 v84, 1, v9'); e('v_lshlrev_b32 v84, 9, v84')
    e('v_lshrrev_b32 v85, 1, v9'); e('v_lshlrev_b32 v85, 4, v85'); e('v_add_u32 v84, v84, v85')
    e('v_lshlrev_b32 v85, 5, v8'); e('v_add_u32 v84, v84, v85')
    e('s_lshl_b32 s10, s56, 12'); e(f's_add_u32 s10, s10, {WS_ZT}')
    e('s_waitcnt lgkmcnt(0)')
    for n in range(8):
        a = ACC + 4*n; k = 64 + 2*n
        e(f'v_lshlrev_b32 v80, 16, v{k}'); e(f'v_and_b32 v81, 0xffff0000, v{k}')
        e(f'v_lshlrev_b32 v82, 16, v{k+1}'); e(f'v_and_b32 v83, 0xffff0000, v{k+1}')
        e(f'v_fmac_f32 v{a+3}, v80, v13'); e(f'v_fmac_f32 v{a+2}, v81, v13')
        e(f'v_fmac_f32 v{a+1}, v82, v13'); e(f'v_fmac_f32 v{a}, v83, v13')
        e(f'v_cvt_pk_bf16_f32 v{96+2*n}, v{a}, v{a+1}'); e(f'v_cvt_pk_bf16_f32 v{97+2*n}, v{a+2}, v{a+3}')
    e('s_nop 1')
    for n in range(0, 8, 2):
        r = 96 + 2*n
        e(f'v_permlane16_swap_b32 v{r}, v{r+2}'); e(f'v_permlane16_swap_b32 v{r+1}, v{r+3}')
        e('s_nop 1')
        e(f'buffer_store_dwordx4 v[{r}:{r+3}], v84, {ssrd(SRD_WS)}, s10 offen offset:{512*n} sc1')
    vq.issue('z', 4)
    st(9)
```

```python
from fz_common import *

WB, XB = 0, 86016
TB = 151552
CSB = 159744
ACC = 16
def acc(fb, sb): return ACC + (fb*4 + sb)*4
def XF(st, sb): return st*16 + sb*4
def WF(st, fb): return 32 + st*28 + fb*4

def c_setup(e):
    e(f's_and_b32 s44, s{S_W4}, 1'); e(f's_lshr_b32 s45, s{S_W4}, 1')
    e('v_and_b32 v8, 15, v1'); e('v_lshrrev_b32 v9, 4, v1')
    e('s_lshl_b32 s10, s44, 6')
    e('v_add_u32 v10, s10, v8'); e('v_lshlrev_b32 v10, 7, v10')
    e('v_and_b32 v11, 7, v8'); e('v_xor_b32 v12, v9, v11'); e('v_lshlrev_b32 v12, 4, v12')
    e('v_add_u32 v2, v10, v12'); e(f'v_add_u32 v2, {XB}, v2'); e('v_xor_b32 v3, 64, v2')
    e('v_lshrrev_b32 v10, 2, v8'); e('v_lshlrev_b32 v11, 3, v9'); e('v_add_u32 v10, v10, v11')
    e('v_mul_u32_u24 v10, 448, v10')
    e('v_and_b32 v11, 3, v8'); e('v_lshlrev_b32 v11, 3, v11'); e('v_add_u32 v10, v10, v11')
    e('s_mul_i32 s10, s45, 224'); e(f's_add_u32 s10, s10, {WB}'); e('v_add_u32 v10, s10, v10')
    e('v_and_b32 v11, 1, v9'); e('v_lshlrev_b32 v11, 5, v11')
    e('v_add_u32 v12, v10, v11'); e('v_sub_u32 v13, v10, v11')
    e('s_cmp_eq_u32 s45, 0'); e('s_cselect_b64 vcc, -1, 0')
    e('v_cndmask_b32 v4, v13, v12, vcc'); e('v_cndmask_b32 v5, v12, v13, vcc')
    e(f'v_add_u32 v6, {3*14336}, v4'); e(f'v_add_u32 v7, {3*14336}, v5')

def c_reads(t):
    st = t & 1; stage = t >> 1; ks = t & 1
    xs = stage % 4; wsl = t % 6
    xr = [f'ds_read_b128 a[{XF(st,sb)}:{XF(st,sb)+3}], v{2+ks} offset:{xs*16384+sb*2048}' for sb in range(4)]
    wr = []
    for fb in range(7):
        for h in range(2):
            base = 4 + (fb & 1) + 2*(wsl >= 3)
            wr.append(f'ds_read_b64_tr_b16 a[{WF(st,fb)+2*h}:{WF(st,fb)+2*h+1}], v{base} offset:{(wsl%3)*14336+32*fb+1792*h}')
    return wr[:2] + xr + wr[2:]

def c_mfmas(t):
    st = t & 1
    out = []
    for fb in range(7):
        for sb in range(4):
            c = '0' if t == 0 else f'v[{acc(fb,sb)}:{acc(fb,sb)+3}]'
            out.append(f'v_mfma_f32_16x16x32_bf16 v[{acc(fb,sb)}:{acc(fb,sb)+3}], a[{WF(st,fb)}:{WF(st,fb)+3}], a[{XF(st,sb)}:{XF(st,sb)+3}], {c}')
    return out

def c_bias_loads(e):
    mk_srd(e, SRD_A, P_B1, 3584*2)
    e(f's_mul_i32 s10, s{S_NT1}, 224'); e('s_mul_i32 s11, s45, 112'); e('s_add_u32 s10, s10, s11')
    e('v_lshrrev_b32 v128, 4, v1'); e('v_lshlrev_b32 v128, 2, v128'); e('v_add_u32 v128, s10, v128'); e('v_lshlrev_b32 v128, 1, v128')
    for fb in range(7): e(f'buffer_load_dwordx2 v[{144+2*fb}:{145+2*fb}], v128, {ssrd(SRD_A)}, 0 offen offset:{32*fb}')
def c_bias_init(e):
    for fb in range(7):
        a = acc(fb, 0)
        e(f'v_lshlrev_b32 v{a}, 16, v{144+2*fb}'); e(f'v_and_b32 v{a+1}, 0xffff0000, v{144+2*fb}')
        e(f'v_lshlrev_b32 v{a+2}, 16, v{145+2*fb}'); e(f'v_and_b32 v{a+3}, 0xffff0000, v{145+2*fb}')
        for sb in range(1, 4):
            for r in range(4): e(f'v_mov_b32 v{acc(fb,sb)+r}, v{a+r}')

def c_epi_pre(e):
    e('v_and_b32 v128, 15, v1')
    e(f's_lshl_b32 s10, s{S_MT1}, 7'); e('s_lshl_b32 s11, s44, 6'); e('s_add_u32 s10, s10, s11')
    e('v_add_u32 v128, s10, v128'); e('v_lshlrev_b32 v128, 4, v128'); e(f'v_add_u32 v128, {WS_ST+8}, v128')
    e('v_lshrrev_b32 v129, 4, v1'); e('v_lshlrev_b32 v129, 4, v129')
    e('s_mul_i32 s10, s45, 448'); e(f's_add_u32 s10, s10, {CSB}'); e('v_add_u32 v129, s10, v129')
    e(f's_lshl_b32 s46, s{S_MT1}, 3'); e('s_lshl_b32 s11, s44, 2'); e('s_add_u32 s46, s46, s11')
    e('s_mul_i32 s46, s46, %d' % (112*1024))
    e(f's_mul_i32 s11, s{S_NT1}, %d' % (7*1024)); e('s_add_u32 s46, s46, s11')
    if WS_H: e(f's_add_u32 s46, s46, {WS_H}')
    e('v_lshlrev_b32 v130, 4, v1')
    e('s_mov_b32 s48, 0x%x' % f2u(C1)); e('s_mov_b32 s49, 0x%x' % f2u(C1))
    e('v_mov_b32 v156, 0x%x' % f2u(C0)); e('v_mov_b32 v157, 0x%x' % f2u(C0))

def c_stats_loads(e):
    WS = ssrd(SRD_WS)
    for sb in range(4):
        e(f'buffer_load_dwordx2 v[{8+2*sb}:{9+2*sb}], v128, {WS}, 0 offen offset:{sb*256} sc1')

def c_epilogue(e):
    WS = ssrd(SRD_WS)
    e('ds_read_b128 v[132:135], v129'); e('ds_read_b128 v[136:139], v129 offset:896')
    e('s_waitcnt vmcnt(0)')
    for sb in range(4): e(f'v_sub_f32 v{9+2*sb}, 0, v{9+2*sb}')
    e('v_mov_b32 v128, 1.0'); e('v_mov_b32 v131, 1.0')
    P = lambda r: f'v[{r}:{r+1}]'
    def gelu_blocks(blks, cs):
        o = []
        A = [acc(fb, sb) for fb, sb, _ in blks]; T = [148, 2]; R = [8 + 2*sb for fb, sb, _ in blks]
        prs = [(a + 2*h, t + 2*h, r, h) for a, t, r in zip(A, T, R) for h in range(2)]
        for a, t, r, h in prs: o.append(f'v_pk_fma_f32 {P(t)}, {P(r)}, {P(cs+2*h)}, {P(cs+4+2*h)} op_sel:[1,0,0] op_sel_hi:[1,1,1]')
        for a, t, r, h in prs: o.append(f'v_pk_fma_f32 {P(a)}, {P(r)}, {P(a)}, {P(t)} op_sel:[0,0,0] op_sel_hi:[0,1,1]')
        for a, t, r, h in prs: o.append(f'v_pk_mul_f32 {P(t)}, {P(a)}, {P(a)}')
        for a, t, r, h in prs: o.append(f'v_pk_fma_f32 {P(t)}, {P(t)}, s[48:49], v[156:157]')
        for a, t, r, h in prs: o.append(f'v_pk_mul_f32 {P(t)}, {P(t)}, {P(a)}')
        for a, t, r, h in prs: o += [f'v_exp_f32 v{t}, v{t}', f'v_exp_f32 v{t+1}, v{t+1}']
        for a, t, r, h in prs: o.append(f'v_pk_add_f32 {P(t)}, {P(t)}, v[128:129] op_sel:[0,0] op_sel_hi:[1,0]')
        for a, t, r, h in prs: o += [f'v_rcp_f32 v{t}, v{t}', f'v_rcp_f32 v{t+1}, v{t+1}']
        for a, t, r, h in prs: o.append(f'v_pk_mul_f32 {P(a)}, {P(a)}, {P(t)}')
        for (fb, sb, outreg), a in zip(blks, A):
            o.append(f'v_cvt_pk_bf16_f32 v{outreg}, v{a}, v{a+1}')
            o.append(f'v_cvt_pk_bf16_f32 v{outreg+1}, v{a+2}, v{a+3}')
        return o
    lab1 = e.newlabel('L_wn1'); labj = e.newlabel('L_wnj')
    e('s_cmp_eq_u32 s45, 1'); e(f's_cbranch_scc1 {lab1}')
    for wn in range(2):
        if wn == 1: e.label(lab1)
        for fb in range(7):
            lb = 7*wn + fb; pair = lb >> 1; half = lb & 1
            cs = 132 + 8*(fb & 1)
            e('s_waitcnt lgkmcnt(0)')
            if fb < 6:
                nc = 132 + 8*((fb+1) & 1)
                e(f'ds_read_b128 v[{nc}:{nc+3}], v129 offset:{(fb+1)*64}')
                e(f'ds_read_b128 v[{nc+4}:{nc+7}], v129 offset:{(fb+1)*64+896}')
            for sb0 in (0, 2):
                sbs = (sb0, sb0+1)
                if lb in (6, 7):
                    e.extend(gelu_blocks([(fb, sb, 152 + 2*(sb & 1)) for sb in sbs], cs))
                    for sb in sbs:
                        o = 152 + 2*(sb & 1)
                        e(f's_add_u32 s11, s46, {sb*112*1024 + pair*1024}')
                        e(f'buffer_store_dwordx2 v[{o}:{o+1}], v130, {WS}, s11 offen offset:{8*half} sc1')
                elif half == 0:
                    e.extend(gelu_blocks([(fb, sb, acc(fb, sb)) for sb in sbs], cs))
                else:
                    e.extend(gelu_blocks([(fb, sb, acc(fb-1, sb)+2) for sb in sbs], cs))
                    for sb in sbs:
                        a0 = acc(fb-1, sb)
                        e(f's_add_u32 s11, s46, {sb*112*1024 + pair*1024}')
                        e(f'buffer_store_dwordx4 v[{a0}:{a0+3}], v130, {WS}, s11 offen sc1')
        if wn == 0: e(f's_branch {labj}')
    e.label(labj)

LB = 132
SX0, SXL, SHI, SW0, SWL = 50, 51, 52, 54, 55
def l_setup(e):
    b = LB
    e(f'v_lshrrev_b32 v{b+11}, 3, v1'); e(f'v_and_b32 v{b+12}, 7, v1')
    e(f'v_xor_b32 v{b+12}, v{b+12}, v{b+11}'); e(f'v_lshlrev_b32 v{b+12}, 4, v{b+12}')
    e(f's_lshl_b32 s10, s{S_W4}, 5')
    e(f'v_add_u32 v{b+11}, s10, v{b+11}'); e(f'v_lshlrev_b32 v{b+11}, 11, v{b+11}')
    e(f'v_add_u32 v{b}, v{b+11}, v{b+12}')
    for q in range(1, 4): e(f'v_add_u32 v{b+q}, {q*(16384-1024)}, v{b}')
    e(f's_lshl_b32 s{SX0}, s{S_MT1}, 18')
    e(f's_lshl_b32 s{SXL}, s{S_W4}, 12'); e(f's_add_u32 s{SXL}, s{SXL}, {XB}')
def l_setup_w(e):
    b = LB
    for q in range(7):
        e(f'v_add_u32 v{b+11}, {64*q}, v1')
        e(f'v_mul_u32_u24 v{b+12}, 2341, v{b+11}'); e(f'v_lshrrev_b32 v{b+12}, 16, v{b+12}')
        e(f'v_mul_u32_u24 v{b+13}, 28, v{b+12}'); e(f'v_sub_u32 v{b+11}, v{b+11}, v{b+13}')
        e(f'v_lshrrev_b32 v{b+13}, 3, v{b+12}'); e(f'v_lshlrev_b32 v{b+13}, 1, v{b+13}')
        e(f'v_xor_b32 v{b+11}, v{b+11}, v{b+13}'); e(f'v_lshlrev_b32 v{b+11}, 4, v{b+11}')
        e(f'v_mul_u32_u24 v{b+12}, 7168, v{b+12}'); e(f'v_add_u32 v{b+11}, v{b+11}, v{b+12}')
        e(f'v_subrev_u32 v{b+4+q}, {1024*(q % 4)}, v{b+11}')
    e(f's_lshr_b32 s{SHI}, s{S_W4}, 1'); e(f's_and_b32 s53, s{S_W4}, 1')
    e(f's_mul_i32 s{SW0}, s{S_NT1}, 448')
    e('s_mul_i32 s10, s53, %d' % (16*7168)); e(f's_add_u32 s{SW0}, s{SW0}, s10')
    e(f's_mul_i32 s10, s{SHI}, %d' % (32*7168)); e(f's_sub_u32 s{SW0}, s{SW0}, s10')
    e(f's_mul_i32 s{SWL}, s{SHI}, %d' % (5*14336))
    e('s_mul_i32 s10, s53, 7168'); e(f's_add_u32 s{SWL}, s{SWL}, s10')
    if WB: e(f's_add_u32 s{SWL}, s{SWL}, {WB}')

def l_dma_x(stage):
    b = LB
    out = [f's_add_u32 m0, s{SXL}, {(stage % 4)*16384}', f's_add_u32 s11, s{SX0}, {stage*128}']
    for q in range(4): out.append(f'buffer_load_dwordx4 v{b+q}, {ssrd(SRD_X)}, s11 offen offset:{1024*q} lds')
    return out
def l_dma_w():
    b = LB
    out = [f's_mov_b32 m0, s{SWL}', 's_nop 0']
    for q in range(4): out.append(f'buffer_load_dwordx4 v{b+4+q}, {ssrd(SRD_W1)}, s{SW0} offen offset:{1024*q} lds')
    out += [f's_add_u32 m0, s{SWL}, 4096', 's_nop 0']
    for q in range(4, 7): out.append(f'buffer_load_dwordx4 v{b+4+q}, {ssrd(SRD_W1)}, s{SW0} offen offset:{1024*(q-4)} lds')
    return out
def l_adv_w():
    return [f's_add_u32 s{SW0}, s{SW0}, {64*7168}', f's_add_u32 s{SWL}, s{SWL}, 28672',
            f's_cmp_ge_u32 s{SWL}, {WB+86016}', 's_cselect_b32 s10, 86016, 0', f's_sub_u32 s{SWL}, s{SWL}, s10']

def period_code(i, spacing=5, gstart=0):
    dm = l_dma_x(i+3) + l_dma_w() + l_adv_w() if i <= 12 else []
    groups = []; cur = []
    for ins in dm:
        cur.append(ins)
        if ins.startswith('buffer_load'): groups.append(cur); cur = []
    if cur:
        groups[-1] = groups[-1] + cur
    def mix(mf, rd, gr):
        out = []; ri = 0; gi = 0
        for k, m in enumerate(mf):
            out.append(m)
            if ri < len(rd): out.append(rd[ri]); ri += 1
            if k >= gstart and (k - gstart) % spacing == 0 and gi < len(gr):
                out.extend(gr[gi]); gi += 1
        out.extend(rd[ri:])
        for g in gr[gi:]: out.extend(g)
        return out
    h = (len(groups) + 1)//2
    o = mix(c_mfmas(2*i), c_reads(2*i+1), groups[:h]) + ['s_waitcnt lgkmcnt(0)']
    o += mix(c_mfmas(2*i+1), c_reads(2*i+2) if 2*i+2 < 32 else [], groups[h:]) + ['s_waitcnt lgkmcnt(0)']
    return o
```

```python
from fz_common import *
SLOT = 24576; NST = 56; NS = 6
ACC = 16
def acc(db, sb): return ACC + (db*4 + sb)*4
def HF(st, kk, sb): return st*48 + kk*24 + sb*4
def WF(st, kk, db): return st*48 + kk*24 + 16 + db*4
XT = 2*SLOT; ZT = 3*SLOT

def c_setup(e):
    e(f's_and_b32 s44, s{S_W4}, 1'); e(f's_lshr_b32 s45, s{S_W4}, 1')
    e('v_and_b32 v8, 15, v1'); e('v_lshrrev_b32 v9, 4, v1')
    e('s_lshl_b32 s10, s44, 13'); e('v_lshlrev_b32 v2, 4, v1'); e('v_add_u32 v2, s10, v2')
    e('v_lshrrev_b32 v10, 2, v8'); e('v_lshlrev_b32 v11, 2, v9'); e('v_add_u32 v10, v10, v11')
    e('v_lshrrev_b32 v11, 1, v10'); e('v_and_b32 v11, 3, v11')
    e('v_lshlrev_b32 v10, 7, v10')
    e('v_and_b32 v12, 3, v8'); e('v_lshlrev_b32 v12, 3, v12'); e('v_add_u32 v10, v10, v12')
    e('v_add_u32 v10, 16384, v10')
    e('s_lshl_b32 s10, s45, 1')
    for db in range(2):
        e(f's_add_u32 s11, s10, {db}')
        e('v_xor_b32 v12, s11, v11'); e('v_lshlrev_b32 v12, 5, v12')
        e(f'v_add_u32 v{3+db}, v10, v12')
    for hb in range((NS+1)//2):
        for i in range(3): e(f'v_add_u32 v{128+hb*3+i}, {hb*2*SLOT}, v{2+i}')

def c_reads(i):
    st = i & 1; sl = i % NS; hb = sl // 2; off = (sl % 2)*SLOT
    out = []
    for kk in range(2):
        for db in range(2):
            for h in range(2):
                out.append(f'ds_read_b64_tr_b16 a[{WF(st,kk,db)+2*h}:{WF(st,kk,db)+2*h+1}], v{129+hb*3+db} offset:{off+kk*4096+h*2048}')
        for sb in range(4):
            out.append(f'ds_read_b128 a[{HF(st,kk,sb)}:{HF(st,kk,sb)+3}], v{128+hb*3} offset:{off+sb*2048+kk*1024}')
    return out
def c_mfmas(i):
    st = i & 1; out = []
    for kk in range(2):
        for db in range(2):
            for sb in range(4):
                c = '0' if (i == 0 and kk == 0) else f'v[{acc(db,sb)}:{acc(db,sb)+3}]'
                out.append(f'v_mfma_f32_16x16x32_bf16 v[{acc(db,sb)}:{acc(db,sb)+3}], a[{WF(st,kk,db)}:{WF(st,kk,db)+3}], a[{HF(st,kk,sb)}:{HF(st,kk,sb)+3}], {c}')
    return out

def c_epi_pre(e):
    WS = ssrd(SRD_WS)
    mk_srd(e, SRD_A, P_B2, 1024*2)
    e(f's_lshl_b32 s10, s{S_MT2}, 7'); e('s_lshl_b32 s11, s44, 6'); e('s_add_u32 s10, s10, s11')
    e('v_add_u32 v64, s10, v8'); e('v_lshlrev_b32 v64, 4, v64'); e(f'v_add_u32 v64, {WS_ST}, v64')
    for sb in range(4):
        e(f'buffer_load_dwordx2 v[{48+2*sb}:{49+2*sb}], v64, {WS}, 0 offen offset:{sb*256} sc1')
    e(f's_lshl_b32 s10, s{S_NT2}, 6'); e('s_lshl_b32 s11, s45, 5'); e('s_add_u32 s10, s10, s11')
    e('v_lshlrev_b32 v65, 2, v9'); e('v_add_u32 v65, s10, v65'); e('v_lshlrev_b32 v65, 1, v65')
    for db in range(2):
        e(f'buffer_load_dwordx2 v[{56+2*db}:{57+2*db}], v65, {ssrd(SRD_A)}, 0 offen offset:{db*32}')
    e('s_lshl_b32 s10, s44, 13')
    e('v_lshlrev_b32 v66, 7, v8'); e('v_add_u32 v66, s10, v66')
    e('v_and_b32 v67, 1, v9'); e('v_lshlrev_b32 v67, 3, v67'); e('v_add_u32 v66, v66, v67')
    e('v_lshrrev_b32 v67, 1, v9'); e('v_and_b32 v68, 7, v8')
    e('s_lshl_b32 s10, s45, 2')
    for db in range(2):
        e(f's_add_u32 s11, s10, {2*db}')
        e('v_add_u32 v69, s11, v67'); e('v_xor_b32 v69, v69, v68'); e('v_lshlrev_b32 v69, 4, v69')
        e(f'v_add_u32 v{70+db}, v66, v69'); e(f'v_add_u32 v{70+db}, {XT}, v{70+db}')
    e('v_lshrrev_b32 v66, 2, v8'); e('v_lshlrev_b32 v67, 2, v9'); e('v_add_u32 v66, v66, v67')
    e('v_and_b32 v67, 7, v66')
    e('s_lshl_b32 s10, s45, 5'); e('v_add_u32 v66, s10, v66'); e('v_lshlrev_b32 v66, 8, v66')
    e('v_and_b32 v68, 3, v8'); e('v_lshlrev_b32 v68, 3, v68'); e('v_add_u32 v66, v66, v68')
    e(f'v_add_u32 v66, {ZT}, v66')
    e('s_lshl_b32 s10, s44, 2')
    for sb in range(4):
        e(f's_add_u32 s11, s10, {sb}')
        e('v_xor_b32 v69, s11, v67'); e('v_lshlrev_b32 v69, 5, v69')
        e(f'v_add_u32 v{72+sb}, v66, v69')

def c_epi(e):
    e('s_waitcnt vmcnt(0)')
    blocks = [(db, sb) for db in range(2) for sb in range(4)]
    def rd(i):
        db, sb = blocks[i]; r = 76 + 4*(i & 1)
        e(f'ds_read_b64 v[{r}:{r+1}], v{70+db} offset:{sb*2048}')
        e(f'ds_read_b64_tr_b16 v[{r+2}:{r+3}], v{72+sb} offset:{db*4096}')
    rd(0)
    for i, (db, sb) in enumerate(blocks):
        if sb == 0:
            e(f'v_lshlrev_b32 v60, 16, v{56+2*db}'); e(f'v_and_b32 v61, 0xffff0000, v{56+2*db}')
            e(f'v_lshlrev_b32 v62, 16, v{57+2*db}'); e(f'v_and_b32 v63, 0xffff0000, v{57+2*db}')
        a = acc(db, sb); r0 = 76 + 4*(i & 1)
        if i + 1 < len(blocks):
            rd(i+1); e('s_waitcnt lgkmcnt(%d)' % (2 if i == 0 else 3))
        else: e('s_waitcnt lgkmcnt(1)')
        e(f'v_lshlrev_b32 v84, 16, v{r0}'); e(f'v_and_b32 v85, 0xffff0000, v{r0}')
        e(f'v_lshlrev_b32 v86, 16, v{r0+1}'); e(f'v_and_b32 v87, 0xffff0000, v{r0+1}')
        e(f'v_lshlrev_b32 v88, 16, v{r0+2}'); e(f'v_and_b32 v89, 0xffff0000, v{r0+2}')
        e(f'v_lshlrev_b32 v90, 16, v{r0+3}'); e(f'v_and_b32 v91, 0xffff0000, v{r0+3}')
        m_, r1 = 48+2*sb, 49+2*sb
        for r in range(4): e(f'v_add_f32 v{a+r}, v{a+r}, v{60+r}')
        for r in range(4): e(f'v_add_f32 v{a+r}, v{a+r}, v{84+r}')
        for r in range(4): e(f'v_sub_f32 v{84+r}, v{84+r}, v{m_}')
        for r in range(4): e(f'v_mul_f32 v{84+r}, v{84+r}, v{r1}')
        for r in range(4): e(f'v_fmac_f32 v{a+r}, v{84+r}, v{88+r}')
        e(f'v_cvt_pk_bf16_f32 v92, v{a}, v{a+1}'); e(f'v_cvt_pk_bf16_f32 v93, v{a+2}, v{a+3}')
        e(f'ds_write_b64 v{70+db}, v[92:93] offset:{sb*2048}')
    e('s_waitcnt lgkmcnt(0)')

def final_store(e, nw=8):
    mk_srd(e, SRD_B, P_OUT, 2048*1024*2)
    e('v_lshrrev_b32 v8, 3, v1'); e('v_and_b32 v9, 7, v1')
    e(f's_lshl_b32 s10, s{S_WAVE}, 4'); e('v_add_u32 v10, s10, v8')
    e('v_lshlrev_b32 v11, 7, v10'); e('v_xor_b32 v12, v9, v8'); e('v_lshlrev_b32 v12, 4, v12'); e('v_add_u32 v11, v11, v12')
    e(f'v_add_u32 v11, {XT}, v11')
    e(f's_lshl_b32 s10, s{S_MT2}, 7'); e('v_add_u32 v10, s10, v10'); e('v_lshlrev_b32 v10, 11, v10')
    e('v_lshlrev_b32 v9, 4, v9'); e('v_add_u32 v10, v10, v9')
    e(f's_lshl_b32 s10, s{S_NT2}, 7')
    for q in range(2): e(f'ds_read_b128 v[{16+4*q}:{19+4*q}], v11 offset:{q*1024}')
    for q in range(2):
        e(f's_waitcnt lgkmcnt({1-q})')
        e(f's_add_u32 s11, s10, {q*8*2048}')
        e(f'buffer_store_dwordx4 v[{16+4*q}:{19+4*q}], v10, {ssrd(SRD_B)}, s11 offen')

def l_setup(e, cwave=False):
    mk_srd(e, SRD_A, P_W2, 3584*1024*2)
    e('v_lshlrev_b32 v2, 4, v1'); e(f'v_add_u32 v3, {112*1024-2048}, v2')
    e(f's_lshl_b32 s44, s{S_MT2}, 3'); e(f's_lshl_b32 s10, s{S_W4}, 1'); e('s_add_u32 s44, s44, s10'); e('s_mul_i32 s44, s44, %d' % (112*1024))
    if WS_H: e(f's_add_u32 s44, s44, {WS_H}')
    e(f's_lshl_b32 s45, s{S_W4}, 12')
    e('v_lshrrev_b32 v6, 3, v1'); e('v_and_b32 v7, 7, v1')
    e('v_lshrrev_b32 v8, 1, v7'); e('v_lshrrev_b32 v9, 1, v6'); e('v_xor_b32 v8, v8, v9'); e('v_lshlrev_b32 v8, 1, v8')
    e('v_and_b32 v9, 1, v7'); e('v_or_b32 v8, v8, v9'); e('v_lshlrev_b32 v8, 4, v8')
    e('v_lshlrev_b32 v6, 11, v6'); e('v_add_u32 v4, v6, v8'); e(f'v_add_u32 v5, {8*2048-1024}, v4')
    e(f's_lshl_b32 s46, s{S_W4}, 15'); e(f's_lshl_b32 s10, s{S_NT2}, 7'); e('s_add_u32 s46, s46, s10')
    e(f's_lshl_b32 s47, s{S_W4}, 11'); e('s_add_u32 s47, s47, 16384')
def l_dma_w(i):
    sl = (i % NS)*SLOT
    out = [f's_add_u32 m0, s47, {sl}', f's_add_u32 s10, s46, {i*64*2048}']
    for q in range(2): out.append(f'buffer_load_dwordx4 v{4+q}, {ssrd(SRD_A)}, s10 offen offset:{1024*q} lds')
    return out
def l_dma_h(i):
    sl = (i % NS)*SLOT
    out = [f's_add_u32 m0, s45, {sl}', f's_add_u32 s10, s44, {i*2048}']
    for q in range(4): out.append(f'buffer_load_dwordx4 v{2+(q>>1)}, {ssrd(SRD_WS)}, s10 offen offset:{1024*q} sc1 lds')
    return out
def l_epi_loads(e):
    e('v_lshrrev_b32 v10, 3, v1'); e('v_and_b32 v11, 7, v1'); e('v_xor_b32 v11, v11, v10'); e('v_lshlrev_b32 v11, 4, v11')
    e(f's_lshl_b32 s10, s{S_W4}, 5'); e('v_add_u32 v10, s10, v10'); e('v_lshlrev_b32 v10, 11, v10'); e('v_add_u32 v12, v10, v11')
    e(f's_lshl_b32 s12, s{S_MT2}, 18'); e(f's_lshl_b32 s11, s{S_NT2}, 7'); e('s_add_u32 s12, s12, s11')
    e(f's_lshl_b32 s11, s{S_W4}, 12'); e(f's_add_u32 m0, s11, {XT}')
    for q in range(4):
        e(f'v_add_u32 v13, {q*(16384-1024)}, v12')
        e(f'buffer_load_dwordx4 v13, {ssrd(SRD_X)}, s12 offen offset:{1024*q} lds')
    e('v_lshrrev_b32 v10, 4, v1'); e('v_and_b32 v11, 15, v1'); e('v_lshrrev_b32 v14, 1, v11'); e('v_and_b32 v11, 1, v11')
    e(f's_lshl_b32 s12, s{S_NT2}, 6'); e(f's_lshl_b32 s11, s{S_W4}, 4'); e('s_add_u32 s12, s12, s11'); e('s_lshl_b32 s12, s12, 12')
    e(f's_lshl_b32 s11, s{S_MT2}, 8'); e('s_add_u32 s12, s12, s11'); e(f's_add_u32 s12, s12, {WS_ZT}')
    e(f's_lshl_b32 s11, s{S_W4}, 12'); e(f's_add_u32 m0, s11, {ZT}')
    for q in range(4):
        e(f'v_add_u32 v15, {4*q}, v10'); e('v_and_b32 v16, 7, v15'); e('v_xor_b32 v16, v16, v14'); e('v_lshlrev_b32 v16, 1, v16')
        e('v_or_b32 v16, v16, v11'); e('v_lshlrev_b32 v16, 4, v16'); e('v_lshlrev_b32 v15, 12, v15'); e('v_add_u32 v15, v15, v16')
        e(f'v_subrev_u32 v15, {1024*q}, v15')
        e(f'buffer_load_dwordx4 v15, {ssrd(SRD_WS)}, s12 offen offset:{1024*q} sc1 lds')
```

```python
from fz_common import *
WS = ssrd(SRD_WS)
S_ROW = 56

def loads(e):
    e(f's_lshl_b32 s{S_ROW}, s{S_MT1}, 7'); e(f's_lshl_b32 s10, s{S_NT1}, 3'); e(f's_add_u32 s{S_ROW}, s{S_ROW}, s10'); e(f's_add_u32 s{S_ROW}, s{S_ROW}, s{S_WAVE}')
    e(f's_lshl_b32 s10, s{S_ROW}, 11'); e('v_lshlrev_b32 v7, 4, v1')
    e(f'buffer_load_dwordx4 v[8:11], v7, {ssrd(SRD_X)}, s10 offen')
    e(f'buffer_load_dwordx4 v[12:15], v7, {ssrd(SRD_X)}, s10 offen offset:1024')

def compute(e):
    e('v_mov_b32 v16, 0x3f803f80'); e('v_mov_b32 v17, 0'); e('v_mov_b32 v18, 0')
    for d in range(8):
        e(f'v_dot2c_f32_bf16 v17, v{8+d}, v16'); e(f'v_dot2c_f32_bf16 v18, v{8+d}, v{8+d}')
    for d in range(8):
        e(f'v_lshlrev_b32 v{24+2*d}, 16, v{8+d}'); e(f'v_and_b32 v{25+2*d}, 0xffff0000, v{8+d}')
    for s in ['row_shr:1', 'row_shr:2', 'row_shr:4', 'row_shr:8']:
        for r in (17, 18): e(f'v_add_f32_dpp v{r}, v{r}, v{r} {s} row_mask:0xf bank_mask:0xf bound_ctrl:1')
        e('s_nop 0')
    for r in (17, 18): e(f'v_add_f32_dpp v{r}, v{r}, v{r} row_bcast:15 row_mask:0xa bank_mask:0xf')
    e('s_nop 0')
    for r in (17, 18): e(f'v_add_f32_dpp v{r}, v{r}, v{r} row_bcast:31 row_mask:0xc bank_mask:0xf')
    e('s_nop 0')
    e('v_readlane_b32 s10, v17, 63'); e('v_readlane_b32 s11, v18, 63'); e('v_mov_b32 v19, 0x3a800000'); e('s_nop 0')
    e('v_mul_f32 v20, s10, v19'); e('v_mul_f32 v21, s11, v19')
    e('v_mov_b32 v19, 0x%x' % f2u(1e-5))
    e('v_fma_f32 v21, -v20, v20, v21'); e('v_max_f32 v21, 0, v21')
    e('v_add_f32 v22, v21, v19'); e('v_rsq_f32 v22, v22'); e('s_nop 0')
    e('v_mul_f32 v23, v22, v22'); e('v_fma_f32 v23, v23, v21, v19'); e('v_rsq_f32 v23, v23'); e('s_nop 0')
    e('v_mov_b32 v21, v22')
    e('v_mul_f32 v22, v22, v23'); e('v_mul_f32 v23, v22, v20')
    for i in range(16): e(f'v_fma_f32 v{24+i}, v{24+i}, v22, -v23')
    for d in range(8): e(f'v_cvt_pk_bf16_f32 v{40+d}, v{24+2*d}, v{25+2*d}')
    e(f's_lshl_b32 s10, s{S_ROW}, 11'); e(f's_add_u32 s10, s10, {WS_Y2}')
    e(f'buffer_store_dwordx4 v[40:43], v7, {WS}, s10 offen sc1')
    e(f'buffer_store_dwordx4 v[44:47], v7, {WS}, s10 offen offset:1024 sc1')
    e(f's_lshl_b32 s10, s{S_ROW}, 4'); e(f's_add_u32 s10, s10, {WS_ST}'); e('v_mov_b32 v19, 0')
    e('s_mov_b64 s[98:99], exec'); e('s_mov_b64 exec, 1')
    e(f'buffer_store_dwordx4 v[20:23], v19, {WS}, s10 offen sc1')
    e('s_mov_b64 exec, s[98:99]')
```

```python
from fz_common import *
from fz_g1 import TB, CSB

class Prog:
    def __init__(self): self.a = []
    def __call__(self, s):
        for line in s.split('\n'):
            line = line.strip()
            if line: self.a.append([line])
    def atom(self, lines): self.a.append(list(lines))
    def vm(self, tag, n=1): self.a.append(('vm', tag, n))
    def wait(self, tags): self.a.append(('wait', tags))
    def bar(self): self.a.append(('bar',))
    def at(self, n): self.a.append(('at', n))
    def mark(self, name): self.a.append(('mark', name))

NT = ' nt'
T0, T1, T2 = 's61', 's62', 's63'
WS = ssrd(SRD_WS)
S_ROW0, S_ST, S_DT, S_CSST, S_CSLD, S_XCD, S_J, S_URA = 50, 51, 52, 54, 55, 53, 58, 60
S_CSM = 48
V_TW, V_TR, V_UR, V_CSO, V_XPF, V_WPF, V_LIN, V_LAM, V_CSL, V_ROW, V_C8, V_RG, V_SEL = 133, 134, 136, 138, 140, 141, 142, 143, 144, 145, 146, 147, 148
V_JUNK = 139

def wave_sum_dpp(regs):
    o = []
    for s in ['row_shr:1', 'row_shr:2', 'row_shr:4', 'row_shr:8']:
        for r in regs: o.append(f'v_add_f32_dpp v{r}, v{r}, v{r} {s} row_mask:0xf bank_mask:0xf bound_ctrl:1')
    for r in regs: o.append(f'v_add_f32_dpp v{r}, v{r}, v{r} row_bcast:15 row_mask:0xa bank_mask:0xf')
    for r in regs: o.append(f'v_add_f32_dpp v{r}, v{r}, v{r} row_bcast:31 row_mask:0xc bank_mask:0xf')
    o.append('s_nop 1')
    return o

def pre_pf(e):
    e(f's_and_b32 s{S_XCD}, s{S_WG}, 7'); e(f's_lshr_b32 s{S_J}, s{S_WG}, 3')
    e(f's_lshl_b32 {T0}, s{S_W4}, 6'); e(f'v_add_u32 v{V_LAM}, {T0}, v1')
    e(f'v_mul_u32_u24 v48, 2341, v{V_LAM}'); e('v_lshrrev_b32 v48, 16, v48')
    e('v_mul_u32_u24 v49, 28, v48'); e(f'v_sub_u32 v49, v{V_LAM}, v49')
    e('v_cmp_lt_u32 vcc, 13, v49'); e('v_lshlrev_b32 v48, 6, v48'); e('s_nop 0')
    e('v_cndmask_b32 v50, 0, 1, vcc'); e('v_add_u32 v48, v48, v50'); e('v_mul_u32_u24 v50, 14, v50'); e('v_sub_u32 v49, v49, v50')
    e(f's_lshl_b32 {T0}, s{S_J}, 1'); e(f'v_add_u32 v48, {T0}, v48'); e('v_mul_u32_u24 v48, 7168, v48')
    e('v_lshlrev_b32 v49, 7, v49'); e('v_add_u32 v48, v48, v49')
    e(f's_lshr_b32 {T0}, s{S_XCD}, 1'); e(f's_mul_i32 {T0}, {T0}, 1792'); e(f'v_add_u32 v{V_WPF}, {T0}, v48')
    e(f'v_lshlrev_b32 v{V_LIN}, 7, v{V_LAM}')

def pre_rest(e):
    mk_srd(e, SRD_A, P_K, 2048*1024*2); mk_srd(e, SRD_B, P_V, 2048*1024*2); mk_srd(e, SRD_C, P_SK, 1024*4*2)
    e(f's_lshl_b32 {T0}, s{S_MT1}, 7'); e(f's_lshl_b32 {T1}, s{S_NT1}, 3'); e(f's_add_u32 {T0}, {T0}, {T1}'); e(f's_lshl_b32 {T1}, s{S_W4}, 1')
    e(f's_add_u32 s{S_ROW0}, {T0}, {T1}')
    e(f's_lshr_b32 s{S_ST}, s{S_WG}, 4'); e(f's_and_b32 s{S_DT}, s{S_WG}, 15')
    e(f'v_and_b32 v{V_C8}, 7, v1'); e(f'v_lshrrev_b32 v{V_RG}, 3, v1')
    e(f's_lshl_b32 {T0}, s{S_W4}, 3'); e(f'v_add_u32 v{V_RG}, {T0}, v{V_RG}')
    e(f'v_lshlrev_b32 v48, 2, v{V_RG}'); e(f's_lshl_b32 {T0}, s{S_ST}, 7'); e(f'v_add_u32 v48, {T0}, v48')
    e(f'v_lshlrev_b32 v49, 4, v{V_C8}'); e(f's_lshl_b32 {T0}, s{S_DT}, 7'); e(f'v_add_u32 v49, {T0}, v49')
    e('v_lshlrev_b32 v48, 11, v48'); e(f'v_add_u32 v{V_ROW}, v48, v49')
    e(f'v_sub_u32 v48, 31, v{V_RG}'); e(f'v_lshlrev_b32 v49, 1, v{V_C8}'); e('v_xor_b32 v48, v48, v49'); e('v_lshlrev_b32 v48, 3, v48')
    e(f'v_lshlrev_b32 v49, 10, v{V_C8}'); e('v_add_u32 v48, v48, v49'); e(f'v_add_u32 v{V_TW}, {TB}, v48')
    e('v_lshrrev_b32 v48, 4, v1'); e(f's_lshl_b32 {T0}, s{S_W4}, 3'); e(f'v_add_u32 v48, {T0}, v48'); e('v_and_b32 v49, 15, v1')
    for q in range(2):
        e(f'v_add_u32 v50, {4*q}, v48'); e('v_lshrrev_b32 v51, 2, v50')
        e('v_xor_b32 v52, v51, v49'); e('v_lshlrev_b32 v52, 4, v52'); e('v_lshlrev_b32 v53, 8, v50'); e('v_add_u32 v52, v52, v53')
        e(f'v_add_u32 v{V_TR+q}, {TB}, v52')
        e('v_lshlrev_b32 v51, 3, v51'); e('v_and_b32 v50, 3, v50'); e('v_add_u32 v51, v51, v50')
        e(f'v_mul_u32_u24 v51, {UR_PITCH}, v51'); e('v_lshlrev_b32 v53, 4, v49'); e(f'v_add_u32 v{V_UR+q}, v51, v53')
    e(f's_lshl_b32 {T0}, s{S_DT}, 6'); e(f's_mul_i32 {T0}, {T0}, {UR_PITCH}'); e(f's_add_u32 {T0}, {T0}, {WS_UR + 3840}')
    e(f's_lshl_b32 {T1}, s{S_ST}, 8'); e(f's_sub_u32 s{S_URA}, {T0}, {T1}')

def pre_cs(e):
    e(f's_cmp_ge_u32 s{S_J}, 14'); e(f's_cselect_b32 {T0}, 1, 0'); e(f's_cmp_ge_u32 s{S_J}, 28'); e(f's_cselect_b32 {T0}, 0, {T0}')
    e(f's_mul_i32 {T1}, {T0}, 14'); e(f's_sub_u32 {T1}, s{S_J}, {T1}'); e(f's_min_u32 {T1}, {T1}, 13')
    e(f's_lshr_b32 {T2}, s{S_XCD}, 1'); e(f's_mul_i32 {T2}, {T2}, 14'); e(f's_add_u32 {T1}, {T1}, {T2}')
    e(f's_and_b32 {T2}, s{S_XCD}, 1'); e(f's_lshl_b32 {T2}, {T2}, 1'); e(f's_add_u32 {T0}, {T0}, {T2}')
    e(f's_lshl_b32 {T0}, {T0}, 2'); e(f's_add_u32 {T0}, {T0}, s{S_W4}')
    e(f's_lshl_b32 s{S_CSLD}, {T0}, 6'); e(f's_mul_i32 s{S_CSLD}, s{S_CSLD}, 7168'); e(f's_lshl_b32 {T2}, {T1}, 7'); e(f's_add_u32 s{S_CSLD}, s{S_CSLD}, {T2}')
    e(f's_mul_i32 {T0}, {T0}, 3584'); e(f's_lshl_b32 {T2}, {T1}, 6'); e(f's_add_u32 {T0}, {T0}, {T2}'); e(f's_lshl_b32 {T0}, {T0}, 2')
    e(f's_add_u32 s{S_CSST}, {T0}, {WS_CS}')
    e('v_lshrrev_b32 v48, 4, v1'); e('v_lshlrev_b32 v48, 1, v48'); e('v_bfe_u32 v49, v1, 3, 1'); e('v_add_u32 v48, v48, v49')
    e('v_mul_u32_u24 v48, 7168, v48'); e('v_and_b32 v49, 7, v1'); e('v_lshlrev_b32 v49, 4, v49'); e(f'v_add_u32 v{V_CSL}, v48, v49')
    e('v_and_b32 v49, 7, v1'); e('v_lshlrev_b32 v49, 5, v49'); e('v_lshrrev_b32 v50, 4, v1'); e('v_lshlrev_b32 v48, 4, v50'); e('v_add_u32 v49, v49, v48')
    e(f's_cmp_lt_u32 s{S_J}, 28'); e(f's_cselect_b32 {T0}, 0, 0x20000000'); e(f'v_add_u32 v{V_CSO}, {T0}, v49')
    e('v_bfe_u32 v48, v1, 3, 1'); e('v_cmp_gt_u32 vcc, 2, v50'); e(f'v_cmp_eq_u32 s[{S_CSM}:{S_CSM+1}], 1, v48'); e('s_nop 1')
    e(f's_and_b64 s[{S_CSM}:{S_CSM+1}], vcc, s[{S_CSM}:{S_CSM+1}]')
    e('v_and_b32 v48, 15, v1'); e('v_and_b32 v49, 1, v48'); e('v_lshlrev_b32 v49, 4, v49'); e('v_mov_b32 v50, 0x3f80'); e('v_lshlrev_b32 v49, v49, v50')
    e('v_lshrrev_b32 v48, 1, v48')
    for q in range(4):
        e(f'v_cmp_eq_u32 vcc, {q}, v48'); e('s_nop 1'); e(f'v_cndmask_b32 v{V_SEL+q}, 0, v49, vcc')

def pf_x(p, a, b):
    p.atom([f'v_cmp_gt_u32 vcc, {32*(b-a)}, v{V_LAM}', 'v_mov_b32 v6, 0x7fffffff', f's_mov_b32 {T0}, {a*128}', f'v_cndmask_b32 v5, v6, v{V_XPF}, vcc',
            f'buffer_load_dword v{V_JUNK}, v5, {ssrd(SRD_X)}, {T0} offen'])
    p.vm('pf')
def pf_w1(p, a, b):
    p.atom([f'v_cmp_gt_u32 vcc, {28*(b-a)}, v{V_LAM}', 'v_mov_b32 v6, 0x7fffffff', f's_mov_b32 {T0}, {a*458752}', f'v_cndmask_b32 v5, v6, v{V_WPF}, vcc',
            f'buffer_load_dword v{V_JUNK}, v5, {ssrd(SRD_W1)}, {T0} offen'])
    p.vm('pf')
def pf_lin(p, ptr, tot, first, n, per):
    p.atom([f's_mov_b32 s{SRD_D}, s{ptr}', f's_and_b32 s{SRD_D+1}, s{ptr+1}, 0xffff', f's_mov_b32 s{SRD_D+2}, {tot}', f's_mov_b32 s{SRD_D+3}, 0x20000',
            f'v_cmp_gt_u32 vcc, {n}, v{V_LAM}', 'v_mov_b32 v6, 0x7fffffff', f's_mul_i32 {T1}, s{S_WG}, {per*128}', f'v_cndmask_b32 v5, v6, v{V_LIN}, vcc',
            f's_add_u32 {T1}, {T1}, {first*128}', f'buffer_load_dword v{V_JUNK}, v5, {ssrd(SRD_D)}, {T1} offen'])
    p.vm('pf')

def stats_loads(p):
    p(f's_lshl_b32 {T0}, s{S_ROW0}, 11'); p('v_lshlrev_b32 v2, 4, v1')
    for rr in range(2):
        p(f'buffer_load_dwordx4 v[{8+8*rr}:{11+8*rr}], v2, {ssrd(SRD_X)}, {T0} offen offset:{2048*rr}'); p.vm('st')
        p(f'buffer_load_dwordx4 v[{12+8*rr}:{15+8*rr}], v2, {ssrd(SRD_X)}, {T0} offen offset:{2048*rr+1024}'); p.vm('st')

def cs_slab_loads(p):
    for t in range(8):
        p(f's_add_u32 {T0}, s{S_CSLD}, {t*8*7168}')
        p(f'buffer_load_dwordx4 a[{4*t}:{4*t+3}], v{V_CSL}, {ssrd(SRD_W1)}, {T0} offen'); p.vm('cs')

def kv_loads(p, part):
    if part == 'k':
        for i in range(7):
            d = (i - 3)*2048
            p(f'v_add_u32 v7, {d}, v{V_ROW}' if d >= 0 else f'v_subrev_u32 v7, {-d}, v{V_ROW}')
            p(f'buffer_load_dwordx4 v[{72+4*i}:{75+4*i}], v7, {ssrd(SRD_A)}, 0 offen{NT}'); p.vm('kv')
        p(f'v_lshlrev_b32 v7, 6, v{V_C8}'); p(f's_lshl_b32 {T0}, s{S_DT}, 9'); p(f'v_add_u32 v7, {T0}, v7')
        for i in range(4):
            p(f'buffer_load_dwordx4 v[{116+4*i}:{119+4*i}], v7, {ssrd(SRD_C)}, 0 offen offset:{16*i}'); p.vm('kv')
    else:
        for i in range(4):
            p(f'v_add_u32 v7, {i*2048}, v{V_ROW}')
            p(f'buffer_load_dwordx4 v[{100+4*i}:{103+4*i}], v7, {ssrd(SRD_B)}, 0 offen{NT}'); p.vm('kv')

def stats(p):
    p('v_mov_b32 v24, 0x3f803f80')
    for r in range(4): p(f'v_mov_b32 v{26+r}, 0')
    for d in range(8):
        for rr in range(2):
            p(f'v_dot2c_f32_bf16 v{26+rr}, v{8+8*rr+d}, v24')
            p(f'v_dot2c_f32_bf16 v{28+rr}, v{8+8*rr+d}, v{8+8*rr+d}')
    p('s_nop 3')
    p.atom(wave_sum_dpp([26, 27, 28, 29]))
    p.atom([f'v_readlane_b32 {T0}, v26, 63', f'v_readlane_b32 {T1}, v27, 63', 'v_mov_b32 v30, 0x3a800000', 's_nop 0',
            f'v_mul_f32 v26, {T0}, v30', f'v_mul_f32 v27, {T1}, v30',
            f'v_readlane_b32 {T0}, v28, 63', f'v_readlane_b32 {T1}, v29, 63', 'v_mov_b32 v31, 0x%x' % f2u(1e-5), 's_nop 0',
            f'v_mul_f32 v28, {T0}, v30', f'v_mul_f32 v29, {T1}, v30'])
    for rr in range(2):
        p(f'v_fma_f32 v{28+rr}, -v{26+rr}, v{26+rr}, v{28+rr}')
    for rr in range(2): p(f'v_max_f32 v{28+rr}, 0, v{28+rr}')
    a = []
    for rr in range(2): a.append(f'v_add_f32 v{32+rr}, v{28+rr}, v31')
    for rr in range(2): a.append(f'v_rsq_f32 v{32+rr}, v{32+rr}')
    for rr in range(2): a.append(f'v_mov_b32 v{36+4*rr}, v{26+rr}')
    for rr in range(2): a.append(f'v_mul_f32 v{34+rr}, v{32+rr}, v{32+rr}')
    for rr in range(2): a.append(f'v_fma_f32 v{34+rr}, v{34+rr}, v{28+rr}, v31')
    for rr in range(2): a.append(f'v_rsq_f32 v{34+rr}, v{34+rr}')
    for rr in range(2): a.append(f'v_mov_b32 v{37+4*rr}, v{32+rr}')
    for rr in range(2): a.append(f'v_mul_f32 v{38+4*rr}, v{32+rr}, v{34+rr}')
    for rr in range(2): a.append(f'v_mul_f32 v{39+4*rr}, v{38+4*rr}, v{26+rr}')
    p.atom(a)
    p.atom(['v_cmp_eq_u32 vcc, 1, v1', f'v_add_u32 v32, s{S_ROW0}, v1', 'v_lshlrev_b32 v32, 4, v32'] + [f'v_cndmask_b32 v{36+i}, v{36+i}, v{40+i}, vcc' for i in range(4)])
    p(f'v_add_u32 v32, {WS_ST}, v32')
    p.atom(['v_cmp_gt_u32 vcc, 2, v1', 's_and_saveexec_b64 s[98:99], vcc',
            f'buffer_store_dwordx4 v[36:39], v32, {WS}, 0 offen sc1', 's_mov_b64 exec, s[98:99]'])
    p.vm('pst')

def colsum(p):
    a = []
    for t in range(8):
        c = '0' if t == 0 else 'v[152:155]'
        a.append(f'v_mfma_f32_16x16x32_bf16 v[152:155], v[{V_SEL}:{V_SEL+3}], a[{4*t}:{4*t+3}], {c}')
    p.atom(a + ['s_nop 7', 's_nop 0'] + [f'v_add_f32_dpp v{152+r}, v{152+r}, v{152+r} row_shr:8 row_mask:0xf bank_mask:0xf bound_ctrl:1' for r in range(4)])
    p.atom(['s_mov_b64 s[98:99], exec', f's_mov_b64 exec, s[{S_CSM}:{S_CSM+1}]',
            f'buffer_store_dwordx4 v[152:155], v{V_CSO}, {WS}, s{S_CSST} offen sc1', 's_mov_b64 exec, s[98:99]'])
    p.vm('pst')

def kv_compute(p, pas):
    for cc in range(2):
        c2 = 2*pas + cc
        for i in range(7):
            p(f'v_lshlrev_b32 v{44+i}, 16, v{72+4*i+c2}'); p(f'v_and_b32 v{51+i}, 0xffff0000, v{72+4*i+c2}')
        for hh in range(2):
            b = 116 + 4*c2 + 2*hh
            p(f'v_lshlrev_b32 v{8+4*hh}, 16, v{b}'); p(f'v_and_b32 v{9+4*hh}, 0xffff0000, v{b}')
            p(f'v_lshlrev_b32 v{10+4*hh}, 16, v{b+1}'); p(f'v_and_b32 v{11+4*hh}, 0xffff0000, v{b+1}')
        for i in range(4):
            p(f'v_lshlrev_b32 v{16+i}, 16, v{100+4*i+c2}'); p(f'v_and_b32 v{20+i}, 0xffff0000, v{100+4*i+c2}')
        for j in (3, 2, 1, 0):
            for hh in range(2):
                kb = 44 + 7*hh; sb = 8 + 4*hh; rb = 24 + 4*hh
                for i in range(4):
                    p(f'v_mul_f32 v{rb+i}, v{kb+i}, v{sb+3}' if j == 3 else f'v_fmac_f32 v{rb+i}, v{kb+i+3-j}, v{sb+j}')
        for hh in range(2):
            for i in range(4): p(f'v_mul_f32 v{24+4*hh+i}, v{24+4*hh+i}, v{16+4*hh+i}')
        for hh in range(2):
            rb = 24 + 4*hh; o = 60 + cc*4 + hh*2
            p(f'v_cvt_pk_bf16_f32 v{o}, v{rb+3}, v{rb+2}'); p(f'v_cvt_pk_bf16_f32 v{o+1}, v{rb+1}, v{rb}')

def kv_write(p):
    p.atom([f'ds_write_b64 v{V_TW}, v[{60+2*i}:{61+2*i}] offset:{i*256}' for i in range(4)] + ['s_waitcnt lgkmcnt(0)'])

def kv_store(p, pas):
    a = [f'ds_read_b128 v[{32+4*q}:{35+4*q}], v{V_TR+q}' for q in range(2)]
    a += [f's_add_u32 {T0}, s{S_URA}, {4*pas*UR_PITCH}', 's_waitcnt lgkmcnt(0)']
    for q in range(2): a.append(f'buffer_store_dwordx4 v[{32+4*q}:{35+4*q}], v{V_UR+q}, {WS}, {T0} offen sc1')
    p.atom(a); p.vm('kst', 2)

def kv_pad(p):
    a = [f'v_mov_b32 v{68+i}, 0' for i in range(4)]
    a += [f's_lshl_b32 {T0}, s{S_W4}, 4', f'v_add_u32 v5, {T0}, v1', f'v_mul_u32_u24 v5, {UR_PITCH}, v5',
          f's_cmp_eq_u32 s{S_ST}, 0', f's_cselect_b32 {T0}, 0, 0x20000000', f'v_add_u32 v5, {T0}, v5',
          f's_lshl_b32 {T0}, s{S_DT}, 6', f's_mul_i32 {T0}, {T0}, {UR_PITCH}', f's_add_u32 {T0}, {T0}, {WS_UR + 4096}',
          'v_cmp_gt_u32 vcc, 16, v1', 's_and_saveexec_b64 s[98:99], vcc',
          f'buffer_store_dwordx4 v[68:71], v5, {WS}, {T0} offen sc1', 's_mov_b64 exec, s[98:99]']
    p.atom(a); p.vm('kst')

def cs_loads(e, vq):
    e(f's_lshl_b32 s10, s{S_W4}, 6'); e('v_add_u32 v20, s10, v1')
    e(f's_mul_i32 s11, s{S_NT1}, 224'); e('v_add_u32 v21, s11, v20')
    e('v_lshlrev_b32 v22, 2, v21'); e(f'v_add_u32 v22, {WS_CS}, v22')
    for p in range(16):
        e(f's_mov_b32 s10, {p*3584*4}')
        e(f'buffer_load_dword v{24+p}, v22, {WS}, s10 offen sc1')
    e('v_lshlrev_b32 v23, 1, v21')
    mk_srd(e, SRD_D, P_B1, 3584*2)
    e(f'buffer_load_ushort v40, v23, {ssrd(SRD_D)}, 0 offen')
    vq.issue('csl', 17)
def cs_finish(e):
    for p in range(1, 16, 2): e(f'v_add_f32 v{24+p-1}, v{24+p-1}, v{24+p}')
    for p in range(0, 16, 4): e(f'v_add_f32 v{24+p}, v{24+p}, v{24+p+2}')
    e('v_add_f32 v24, v24, v28'); e('v_add_f32 v32, v32, v36'); e('v_add_f32 v24, v24, v32')
    e('v_lshlrev_b32 v40, 16, v40')
    e('v_lshlrev_b32 v20, 2, v20'); e(f'v_add_u32 v20, {CSB}, v20')
    e('v_cmp_gt_u32 vcc, 0x%x, v20' % (CSB + 896))
    lab = e.newlabel('L_x')
    e('s_and_saveexec_b64 s[98:99], vcc'); e(f's_cbranch_execz {lab}')
    e('ds_write_b32 v20, v24'); e('ds_write_b32 v20, v40 offset:896')
    e.label(lab); e('s_mov_b64 exec, s[98:99]'); e('s_waitcnt lgkmcnt(0)')

def cost(line):
    if line.startswith('v_dot2'): return 2.0
    if line.startswith('v_mfma'): return 2.0
    if line.startswith('v_'): return 1.0
    if line.startswith('buffer_') or line.startswith('ds_'): return 2.0
    return 0.4

class Slicer:
    def __init__(self, prog): self.a = prog.a; self.i = 0; self.marks = {}
    def done(self): return self.i >= len(self.a)
    def emit(self, e, vq, budget, period):
        c = 0.0
        while self.i < len(self.a):
            x = self.a[self.i]
            if isinstance(x, tuple):
                if x[0] == 'at':
                    if period < x[1]: return
                    self.i += 1; continue
                self.i += 1
                if x[0] == 'vm': vq.issue(x[1], x[2])
                elif x[0] == 'wait': vq.wait(e, x[1])
                elif x[0] == 'mark': self.marks[x[1]] = period
                elif x[0] == 'bar': return
                continue
            cc = sum(cost(l) for l in x)
            if c > 0 and c + cc > budget: return
            for l in x: e(l)
            c += cc; self.i += 1

def program(o):
    p = Prog(); g = o.get
    sched = g('pfs', {0: (5, 7), 1: (7, 9), 2: (9, 11), 3: (11, 13), 4: (13, 16)})
    sched = {int(k): v for k, v in sched.items()}
    def tick(i):
        p.at(i)
        if i in sched: pf_w1(p, *sched[i])
    tick(0)
    p.at(g('at_stc', 0)); p.wait(['st']); stats(p); p.mark('st')
    tick(1); p.at(g('at_k', 1)); kv_loads(p, 'k')
    tick(2); p.at(g('at_v', 2)); kv_loads(p, 'v')
    tick(3); tick(4)
    p.at(g('at_kvc', 5)); p.wait(['kv'])
    kv_compute(p, 0); kv_write(p)
    p.at(g('at_cs', 6)); cs_slab_loads(p)
    p.bar()
    kv_store(p, 0); p.mark('stA')
    p.wait(['cs']); colsum(p); p.mark('pf1')
    kv_compute(p, 1)
    p.mark('wrB'); kv_write(p); p.bar()
    kv_store(p, 1); kv_pad(p); p.mark('pf2')
    return p
```

```python
import sys
from fz_common import *
import fz_g1 as g1, fz_g2 as g2, fz_prep as prep, fz_conv as conv, fz_ln as ln

KNAME = 'parallel_sum__ssm_conv_h3__mixer_channel_mlp__prompt_kernel'
WS = ssrd(SRD_WS)
LDS_NONCE = 163328
NON = f's{S_NONCE}'

def flag_store(e, soff, va=142):
    e(f'v_mov_b32 v{va}, 0'); e(f'v_mov_b32 v{va+1}, {NON}')
    e(f'buffer_store_dword v{va+1}, v{va}, {WS}, {soff} offen sc1')

def emit_prog(e, vq, fn):
    p = prep.Prog(); fn(p); sl = prep.Slicer(p); sl.emit(e, vq, 1e9, 99); assert sl.done()

def gen(name=KNAME, stamps=False, opt=None):
    opt = opt or {}
    BUD = opt.get('budget', 70); PUBD = opt.get('pubd', 2); W2P = opt.get('at_w2', 9)
    sl = prep.Slicer(prep.program(opt)); dq = VQ(); de = Em()
    for i in range(0, 16): sl.emit(de, dq, BUD, i)
    assert sl.done(), ('prep program does not fit', sl.i, len(sl.a))
    assert sl.marks['wrB'] > sl.marks['stA']
    pub0 = max(sl.marks['st'] + PUBD, 2); pub1 = sl.marks['pf1'] + PUBD; pub2 = sl.marks['pf2'] + PUBD
    assert pub1 <= 13 and pub2 <= 15 and sl.marks['wrB'] < 13, sl.marks
    if opt.get('verbose'): print('marks', sl.marks)

    e = Em()
    END = 'L_end_' + name
    e('s_cmp_ge_u32 s2, 256'); e(f's_cbranch_scc1 {END}')
    e('s_load_dwordx16 s[64:79], s[0:1], 0')
    e('s_load_dwordx8 s[80:87], s[0:1], 64')
    e('s_load_dwordx4 s[88:91], s[0:1], 96')
    e('v_lshrrev_b32 v1, 6, v0'); e('s_nop 1'); e(f'v_readfirstlane_b32 s{S_WAVE}, v1'); e('v_and_b32 v1, 63, v0')
    e(f's_and_b32 s{S_W4}, s{S_WAVE}, 3')
    e('s_and_b32 s10, s2, 7'); e('s_lshr_b32 s11, s2, 3')
    e(f's_and_b32 s{S_MT1}, s10, 1'); e(f's_lshl_b32 s{S_MT1}, s{S_MT1}, 3'); e('s_and_b32 s12, s11, 7'); e(f's_add_u32 s{S_MT1}, s{S_MT1}, s12')
    e(f's_lshr_b32 s{S_NT1}, s10, 1'); e(f's_lshl_b32 s{S_NT1}, s{S_NT1}, 2'); e('s_lshr_b32 s12, s11, 3'); e(f's_add_u32 s{S_NT1}, s{S_NT1}, s12')
    e(f's_and_b32 s{S_MT2}, s10, 3'); e(f's_lshl_b32 s{S_MT2}, s{S_MT2}, 2'); e('s_and_b32 s12, s11, 3'); e(f's_add_u32 s{S_MT2}, s{S_MT2}, s12')
    e(f's_lshr_b32 s{S_NT2}, s10, 2'); e(f's_lshl_b32 s{S_NT2}, s{S_NT2}, 3'); e('s_lshr_b32 s12, s11, 2'); e(f's_add_u32 s{S_NT2}, s{S_NT2}, s12')
    e('s_waitcnt lgkmcnt(0)')
    mk_srd(e, SRD_X, P_X, 2048*1024*2); mk_srd(e, SRD_W1, P_W1, 1024*3584*2); mk_srd(e, SRD_WS, P_WS, 0x10000000)
    if stamps:
        e('v_mov_b32 v158, 0'); e('v_mov_b32 v159, 0')
        tick(e, 0)
    st = (lambda n: tick(e, n)) if stamps else (lambda n: None)
    LAB_L = 'L_loader_' + name
    e(f's_cmp_ge_u32 s{S_WAVE}, 4'); e(f's_cbranch_scc1 {LAB_L}')

    def get_nonce(v=2):
        e(f'v_mov_b32 v{v}, {LDS_NONCE}'); e(f'ds_read_b32 v{v+1}, v{v}'); e('s_waitcnt lgkmcnt(0)'); e(f'v_readfirstlane_b32 {NON}, v{v+1}')

    g1.l_setup(e)
    e.extend(g1.l_dma_x(0))
    g1.l_setup_w(e)
    lab = e.newlabel('L_skip')
    e(f's_cmp_eq_u32 s{g1.SHI}, 1'); e(f's_cbranch_scc1 {lab}')
    e.extend(g1.l_dma_w()); e.label(lab); e.extend(g1.l_adv_w())
    e.extend(g1.l_dma_x(1)); e.extend(g1.l_dma_w()); e.extend(g1.l_adv_w())
    e.extend(g1.l_dma_x(2)); e.extend(g1.l_dma_w()); e.extend(g1.l_adv_w())
    g1.c_setup(e)
    e('s_waitcnt vmcnt(11)')
    e('s_barrier')
    e.extend(g1.c_reads(0)); e('s_waitcnt lgkmcnt(0)')
    st(1)
    for i in range(16):
        e('s_barrier')
        st(16 + i)
        if i == 13:
            lab = e.newlabel('L_s13')
            e(f's_cmp_eq_u32 s{g1.SHI}, 0'); e(f's_cbranch_scc1 {lab}'); e.extend(g1.l_dma_w()); e.label(lab)
        if i == 14: g1.c_epi_pre(e); get_nonce(2 if False else 143)
        if i == 15: g1.c_stats_loads(e)
        e.extend(g1.period_code(i, opt.get('spacing', 5), opt.get('gstart', 0)))
        if i <= 12: e('s_waitcnt vmcnt(11)')
        elif i == 13:
            lab = e.newlabel('L_w13'); lab2 = e.newlabel('L_w13j')
            e(f's_cmp_eq_u32 s{g1.SHI}, 0'); e(f's_cbranch_scc1 {lab}')
            e('s_waitcnt vmcnt(7)'); e(f's_branch {lab2}')
            e.label(lab); e('s_waitcnt vmcnt(0)'); e.label(lab2)
        elif i == 14: e('s_waitcnt vmcnt(0)')
    e('s_barrier')
    st(2)
    g1.c_epilogue(e)
    st(7)
    e('s_barrier')
    g2.l_setup(e, cwave=True)
    e('s_waitcnt vmcnt(0)')
    e(f's_lshl_b32 s10, s{S_MT1}, 6'); e(f's_lshl_b32 s11, s{S_NT1}, 2'); e('s_add_u32 s10, s10, s11'); e(f's_add_u32 s10, s10, s{S_W4}')
    e('s_lshl_b32 s10, s10, 2'); e(f's_add_u32 s10, s10, {WS_FL + FL_HF}')
    flag_store(e, 's10')
    st(3)
    for i in range(3): e.extend(g2.l_dma_w(i))
    e('v_lshlrev_b32 v10, 2, v1'); e(f's_lshl_b32 s12, s{S_MT2}, 8'); e(f's_add_u32 s12, s12, {WS_FL + FL_HF}')
    poll_flags(e, SRD_WS, 10, 's12', NON, 11)
    st(8)
    for i in range(3): e.extend(g2.l_dma_h(i))
    g2.c_setup(e)
    e('s_waitcnt vmcnt(0)')
    st(9)
    e('s_barrier')
    e.extend(g2.c_reads(0)); e('s_waitcnt lgkmcnt(0)')
    st(4)
    for i in range(g2.NST):
        e('s_barrier')
        e.extend(interleave(g2.c_mfmas(i), g2.c_reads(i+1) if i+1 < g2.NST else []))
        if i == g2.NST - 2: g2.c_epi_pre(e)
        e('s_waitcnt lgkmcnt(0)')
    e('s_barrier')
    st(5)
    g2.c_epi(e)
    e('s_barrier')
    g2.final_store(e)
    if stamps:
        e('s_waitcnt vmcnt(0)'); st(6); tick_dump(e)
    e(f's_branch {END}')

    e.label(LAB_L)
    vq = VQ()
    mk_srd(e, SRD_D, P_DBG, 256)
    lab0 = e.newlabel('L_tag')
    e(f's_cmp_eq_u32 s{S_WAVE}, 4'); e(f's_cbranch_scc0 {lab0}')
    e('s_cmp_eq_u32 s2, 0'); e(f's_cbranch_scc0 {lab0}')
    e('v_mov_b32 v2, 0'); e(f's_mov_b32 s12, {WS_FL + FL_EP}')
    e(f'buffer_load_dword v3, v2, {WS}, s12 offen sc1'); e('s_waitcnt vmcnt(0)')
    e('v_add_u32 v3, 1, v3'); e('v_or_b32 v3, 0x80000000, v3')
    e(f'buffer_store_dword v3, v2, {ssrd(SRD_D)}, 0 offen sc1')
    e(f'buffer_store_dword v3, v2, {WS}, s12 offen sc1')
    e.label(lab0)
    prep.pre_pf(e)
    emit_prog(e, vq, lambda p: prep.pf_w1(p, 3, 5))
    prep.pre_rest(e)
    emit_prog(e, vq, prep.stats_loads)
    prep.pre_cs(e)
    e('s_barrier')
    e('s_barrier')
    st(1)
    def wave0(body):
        lab = e.newlabel('L_w0')
        e(f's_cmp_eq_u32 s{S_W4}, 0'); e(f's_cbranch_scc0 {lab}'); body(); e.label(lab)
    sl = prep.Slicer(prep.program(opt))
    for i in range(16):
        if i == 0:
            def body():
                labq = e.newlabel('L_tq'); labx = e.newlabel('L_tx')
                mk_srd(e, SRD_D, P_DBG, 256)
                e('v_mov_b32 v2, 0'); e('s_mov_b32 s14, 0x200000')
                e.label(labq)
                e(f'buffer_load_dword v3, v2, {ssrd(SRD_D)}, 0 offen sc1'); e('s_waitcnt vmcnt(0)')
                e('v_cmp_eq_u32 vcc, 0, v3'); e('s_sub_u32 s14, s14, 1'); e('s_cmp_eq_u32 s14, 0'); e(f's_cbranch_scc1 {labx}')
                e(f's_cbranch_vccz {labx}'); e('s_sleep 1'); e(f's_branch {labq}')
                e.label(labx)
                e(f'v_mov_b32 v2, {LDS_NONCE}'); e('ds_write_b32 v2, v3'); e('s_waitcnt lgkmcnt(0)')
            wave0(body)
        if i == 1:
            get_nonce()
            e('s_lshl_b32 s10, s2, 2'); e(f's_add_u32 s10, s10, s{S_W4}'); e('s_lshl_b32 s10, s10, 2'); e(f's_add_u32 s59, s10, {WS_FL + FL_ZF}')
        if i == pub0:
            def body():
                e(f's_lshl_b32 s10, s{S_MT1}, 4'); e(f's_add_u32 s10, s10, s{S_NT1}'); e('s_lshl_b32 s10, s10, 2'); e(f's_add_u32 s10, s10, {WS_FL + FL_YF}')
                flag_store(e, 's10', va=2)
            wave0(body)
        if i == pub1:
            def body():
                lab = e.newlabel('L_cf')
                e(f's_cmp_lt_u32 s{prep.S_J}, 28'); e(f's_cbranch_scc0 {lab}')
                e(f's_lshr_b32 s10, s{prep.S_XCD}, 1'); e('s_lshl_b32 s10, s10, 6'); e(f's_and_b32 s11, s{prep.S_XCD}, 1'); e('s_mul_i32 s11, s11, 28')
                e('s_add_u32 s10, s10, s11'); e(f's_add_u32 s10, s10, s{prep.S_J}'); e('s_lshl_b32 s10, s10, 2'); e(f's_add_u32 s10, s10, {WS_FL + FL_CF}')
                flag_store(e, 's10', va=2)
                e.label(lab)
            wave0(body)
        if i == pub2:
            def body():
                e(f's_lshl_b32 s10, s{prep.S_DT}, 4'); e(f's_add_u32 s10, s10, s{prep.S_ST}'); e('s_lshl_b32 s10, s10, 2'); e(f's_add_u32 s10, s10, {WS_FL + FL_UF}')
                flag_store(e, 's10', va=2)
            wave0(body)
        sl.emit(e, vq, BUD, i)
        if W2P <= i < W2P + 4:
            emit_prog(e, vq, lambda p: prep.pf_lin(p, P_W2, 3584*1024*2, 56*(i - W2P), 56, 224))
        if i == 13:
            e('v_and_b32 v9, 15, v1'); e('v_lshlrev_b32 v9, 2, v9'); e(f's_lshl_b32 s12, s{S_MT1}, 6'); e(f's_add_u32 s12, s12, {WS_FL + FL_YF}')
            e(f'buffer_load_dword v8, v9, {WS}, s12 offen sc1')
            e('v_min_u32 v10, 55, v1'); e('v_lshlrev_b32 v10, 2, v10'); e(f's_lshr_b32 s13, s{S_NT1}, 2'); e('s_lshl_b32 s13, s13, 8'); e(f's_add_u32 s13, s13, {WS_FL + FL_CF}')
            e(f'buffer_load_dword v11, v10, {WS}, s13 offen sc1')
            vq.issue('smp', 2)
        if i == 14:
            vq.wait(e, 'smp')
            check_or_poll(e, SRD_WS, 9, 's12', NON, 8)
            check_or_poll(e, SRD_WS, 10, 's13', NON, 11)
            prep.cs_loads(e, vq)
        if i == 15:
            e('v_and_b32 v10, 15, v1'); e('v_lshlrev_b32 v10, 2, v10'); e('s_lshr_b32 s12, s2, 4'); e('s_lshl_b32 s12, s12, 6'); e(f's_add_u32 s12, s12, {WS_FL + FL_UF}')
            e(f'buffer_load_dword v12, v10, {WS}, s12 offen sc1'); vq.issue('smp2')
            vq.wait(e, 'csl'); prep.cs_finish(e)
            conv.base(e)
        if i == pub0 - 1: vq.wait(e, 'pst') if sl.marks.get('pf1') is None else None
        if i == pub1 - 1: vq.wait(e, 'pst')
        if i == pub2 - 1: vq.wait(e, 'kst')
        st(16 + i)
        e('s_barrier')
    assert sl.done()
    st(2)
    vq.wait_all(e)
    check_or_poll(e, SRD_WS, 10, 's12', NON, 12)
    conv.setup(e, vq)
    st(10)
    e('s_barrier')
    conv.compute(e, vq, st)
    vq.wait_all(e)
    flag_store(e, 's59', va=2); vq.issue('zf')
    st(3)
    g2.l_setup(e)
    e('s_barrier')
    for i in range(3, g2.NS): e.extend(g2.l_dma_w(i)); e.extend(g2.l_dma_h(i)); vq.issue(f'g{i}', 6)
    st(4)
    e('s_barrier')
    for i in range(g2.NST):
        if i + g2.NS < g2.NST:
            e.extend(g2.l_dma_w(i+g2.NS)); e.extend(g2.l_dma_h(i+g2.NS)); vq.issue(f'g{i+g2.NS}', 6)
        if i == g2.NST - 5:
            e('v_lshlrev_b32 v10, 2, v1'); e(f's_lshl_b32 s12, s{S_NT2}, 8'); e(f's_add_u32 s12, s12, {WS_FL + FL_ZF}')
            e(f'buffer_load_dword v11, v10, {WS}, s12 offen sc1'); vq.issue('smp3')
        if i == g2.NST - 4:
            vq.wait(e, 'smp3')
            check_or_poll(e, SRD_WS, 10, 's12', NON, 11)
            g2.l_epi_loads(e); vq.issue('epi', 8)
        if i + 2 < g2.NST: vq.wait(e, f'g{i+2}')
        if i == g2.NST - 1: vq.wait_all(e)
        e('s_barrier')
    st(5)
    e('s_barrier')
    g2.final_store(e)
    if stamps:
        e('s_waitcnt vmcnt(0)'); st(6); tick_dump(e)
    e.label(END)
    return kernel(name, e.text(), 256, 160)

def header():
    return open('ref_header.txt').read()

def full(stamps=False, opt=None):
    return header() + '; @launch grid=(256,1,1) block=(512,1,1) lds=163840\n' + HDR + gen(stamps=stamps, opt=opt)

NAMES_C = {0:'start',1:'main0',2:'main_end',7:'gelu',3:'h_ack',8:'hpoll',9:'pre3',4:'g2_start',5:'g2_end',6:'end'}
NAMES_L = {0:'start',1:'B0',2:'main_end',10:'cv_iss',7:'cv_data',8:'cv_mfma',9:'z_iss',3:'z_ack',4:'g2',5:'g2_end',6:'end'}

if __name__ == '__main__':
    import json
    out = sys.argv[1] if len(sys.argv) > 1 else 'fused.s'
    opt = json.loads(sys.argv[2]) if len(sys.argv) > 2 else {}
    opt['verbose'] = True
    t = full(opt=opt)
    open(out, 'w').write(t)
    print(len(t), 'bytes', t.count('\n'), 'lines')
```

```python
from asmlib import *
import struct, math

def f2u(x): return struct.unpack('<I', struct.pack('<f', x))[0]
C0 = -2.0 * math.sqrt(2.0 / math.pi) * math.log2(math.e)
C1 = C0 * 0.044715

import os
WS_BASE = int(os.environ.get('WS_BASE', '0'), 0)
WS_H   = WS_BASE + 0x0000000
WS_UR  = WS_BASE + 0x1000000
WS_ZT  = WS_BASE + 0x1500000
WS_ST  = WS_BASE + 0x1A00000
WS_CS  = WS_BASE + 0x1A10000
WS_FL  = WS_BASE + 0x1A60000
WS_TM  = WS_BASE + 0x1B00000
WS_XP  = WS_BASE + 0x1C00000
WS_Y2  = WS_BASE + 0x2400000
UR_PITCH = 4224
FL_CF = 0x800
FL_YF, FL_UF, FL_HF, FL_ZF, FL_XF, FL_EP = 0x0, 0x400, 0x1000, 0x2000, 0x3000, 0x8000
S_NONCE = 97

S_WG, S_WAVE, S_W4, S_MT1, S_NT1, S_MT2, S_NT2 = 2, 4, 5, 6, 7, 8, 9
SRD_X, SRD_W1, SRD_WS, SRD_A, SRD_B, SRD_C, SRD_D = 16, 20, 24, 28, 32, 36, 40
P_X, P_K, P_V, P_SK, P_SSM, P_D, P_BX, P_W1 = 64, 66, 68, 70, 72, 74, 76, 78
P_B1, P_W2, P_B2, P_OUT = 80, 82, 84, 86
P_DBG, P_WS = 88, 90
S_STB = 96

def ssrd(d): return f's[{d}:{d+3}]'
def mk_srd(e, d, p, nbytes): srd(e, d, p, p+1, nbytes)

def stamp(e, slot, vt=156):
    e('s_memtime s[92:93]'); e('s_memrealtime s[94:95]'); e('s_waitcnt lgkmcnt(0)')
    e(f'v_mov_b32 v{vt}, s92'); e(f'v_mov_b32 v{vt+1}, s94'); e(f'v_mov_b32 v{vt+2}, s{S_STB}')
    e(f'buffer_store_dwordx2 v[{vt}:{vt+1}], v{vt+2}, {ssrd(SRD_WS)}, 0 offen offset:{slot*8}')

class VQ:
    def __init__(self): self.q = []
    def issue(self, tag, n=1): self.q += [tag]*n
    def count_after(self, tags):
        last = -1
        for i, t in enumerate(self.q):
            if t in tags: last = i
        return len(self.q) - 1 - last
    def wait(self, e, tags):
        if isinstance(tags, str): tags = [tags]
        if not any(t in tags for t in self.q): return
        n = self.count_after(tags)
        assert n <= 63, n
        e(f's_waitcnt vmcnt({n})')
        self.q = self.q[len(self.q)-n:] if n else []
    def wait_all(self, e):
        e('s_waitcnt vmcnt(0)'); self.q = []

def poll_flags(e, srd_reg, voff, soff, expect, vtmp, nlanes=64, lab_prefix='L_poll'):
    lab = e.newlabel(lab_prefix); labx = e.newlabel(lab_prefix + 'x')
    e('s_mov_b32 s14, 0x200000')
    e.label(lab)
    e(f'buffer_load_dword v{vtmp}, v{voff}, {ssrd(srd_reg)}, {soff} offen sc1')
    e('s_waitcnt vmcnt(0)')
    e(f'v_cmp_ne_u32 vcc, {expect}, v{vtmp}')
    e('s_sub_u32 s14, s14, 1')
    e('s_cmp_eq_u32 s14, 0'); e(f's_cbranch_scc1 {labx}')
    e(f's_cbranch_vccz {labx}')
    e('s_sleep 4')
    e(f's_branch {lab}')
    e.label(labx)

def check_or_poll(e, srd_reg, voff, soff, expect, vtmp):
    skip = e.newlabel('L_ok')
    e(f'v_cmp_ne_u32 vcc, {expect}, v{vtmp}')
    e('s_nop 0')
    e(f's_cbranch_vccz {skip}')
    poll_flags(e, srd_reg, voff, soff, expect, vtmp)
    e.label(skip)

def tick(e, idx, vreg=159):
    e('s_memtime s[92:93]'); e('s_memrealtime s[94:95]'); e('s_waitcnt lgkmcnt(0)')
    e(f'v_writelane_b32 v{vreg}, s92, {idx}'); e(f'v_writelane_b32 v{vreg-1}, s94, {idx}')
def tick_dump(e, vreg=159):
    e(f's_lshl_b32 s10, s{S_WG}, 3'); e(f's_add_u32 s10, s10, s{S_WAVE}'); e('s_lshl_b32 s10, s10, 9'); e(f's_add_u32 s10, s10, {WS_TM + 0x100000}')
    e('v_lshlrev_b32 v154, 3, v1')
    e(f'v_mov_b32 v156, v{vreg}'); e(f'v_mov_b32 v157, v{vreg-1}')
    e(f'buffer_store_dwordx2 v[156:157], v154, {ssrd(SRD_WS)}, s10 offen')
```

```python
from fz_common import *
CP = 4160; HOFF = 4*CP; CW = HOFF + 512 + 4096
CWB0 = 73728

def base(e):
    e(f's_lshl_b32 s56, s{S_WG}, 2'); e(f's_add_u32 s56, s56, s{S_W4}')
    e(f's_mul_i32 s57, s{S_W4}, {CW}'); e(f's_add_u32 s57, s57, {CWB0}')
    mk_srd(e, SRD_A, P_SSM, 1024*2048*2); mk_srd(e, SRD_B, P_D, 1024*2)

def setup(e, vq):
    e('v_lshlrev_b32 v2, 4, v1')
    e('v_mov_b32 v4, 0'); e('v_mov_b32 v5, 0')
    e('v_lshlrev_b32 v3, 3, v1'); e('v_add_u32 v3, s57, v3')
    e(f'ds_write_b64 v3, v[4:5] offset:{HOFF}')
    e('v_lshrrev_b32 v6, 3, v1'); e('v_and_b32 v6, 3, v6'); e(f'v_mul_u32_u24 v6, {CP}, v6')
    e('v_and_b32 v7, 7, v1'); e('v_lshlrev_b32 v7, 3, v7'); e('v_add_u32 v6, v6, v7'); e('v_add_u32 v6, s57, v6')
    e('ds_write_b64 v6, v[4:5] offset:4096')
    e(f's_add_u32 m0, s57, {HOFF+512}'); e('s_lshl_b32 s10, s56, 12')
    for q in range(4): e(f'buffer_load_dwordx4 v2, {ssrd(SRD_A)}, s10 offen offset:{1024*q} lds')
    e(f's_mul_i32 s58, s56, {UR_PITCH}'); e(f's_add_u32 s58, s58, {WS_UR}')
    for c in (0, 2):
        e(f's_add_u32 m0, s57, {c*CP}'); e(f's_add_u32 s10, s58, {2*c}')
        for q in range(4): e(f'buffer_load_dwordx4 v2, {ssrd(SRD_WS)}, s10 offen offset:{1024*q} sc1 lds')
    e('s_lshl_b32 s10, s56, 1'); e('v_mov_b32 v12, s10')
    e(f'buffer_load_ushort v13, v12, {ssrd(SRD_B)}, 0 offen')
    vq.issue('cv', 13)

def odd_copies(e, vq):
    vq.wait_all(e); e('s_waitcnt lgkmcnt(0)')
    e('v_lshlrev_b32 v2, 4, v1'); e('v_add_u32 v2, s57, v2')
    for q in range(4):
        b = 16 + 8*q
        e(f'ds_read_b128 v[{b}:{b+3}], v2 offset:{1024*q}'); e(f'ds_read_b64 v[{b+4}:{b+5}], v2 offset:{1024*q+16}')
    for q in range(4):
        b = 16 + 8*q; o = 48 + 8*q
        e(f's_waitcnt lgkmcnt({6 - 2*q + 2*q if False else 2*(3-q) + 2*q})') if False else None
    e('s_waitcnt lgkmcnt(0)')
    for q in range(4):
        b = 16 + 8*q; o = 48 + 8*q
        for i in range(4): e(f'v_alignbyte_b32 v{o+i}, v{b+i+1}, v{b+i}, 2')
        for i in range(4): e(f'v_alignbyte_b32 v{o+4+i}, v{b+i+2}, v{b+i+1}, 2')
        e(f'ds_write_b128 v2, v[{o}:{o+3}] offset:{CP + 1024*q}')
        e(f'ds_write_b128 v2, v[{o+4}:{o+7}] offset:{3*CP + 1024*q}')

def compute(e, vq, st=lambda n: None):
    e('v_and_b32 v8, 15, v1'); e('v_lshrrev_b32 v9, 4, v1')
    e('v_sub_u32 v10, 3, v8'); e('v_and_b32 v10, 3, v10'); e(f'v_mul_u32_u24 v10, {CP}, v10')
    e('v_sub_u32 v11, 2047, v8'); e('v_and_b32 v11, 0xfffffffc, v11')
    e('v_lshlrev_b32 v12, 3, v9'); e('v_add_u32 v11, v11, v12')
    e(f'v_subrev_u32 v11, {32*63+16}, v11'); e('v_lshlrev_b32 v11, 1, v11')
    e('v_add_u32 v10, v10, v11'); e('v_add_u32 v10, s57, v10')
    e('v_lshlrev_b32 v11, 4, v8'); e('v_lshlrev_b32 v12, 3, v9'); e('v_add_u32 v11, v11, v12')
    e('v_lshlrev_b32 v11, 1, v11'); e(f'v_add_u32 v11, {HOFF+512-480}, v11'); e('v_add_u32 v11, s57, v11')
    ACC = 16
    def AF(st, p): return ('a', st*32 + p*4)
    def BF(st, m): return ('a', 64 + m*4) if st == 0 else ('v', 64 + m*4)
    def rg(t, n): return f'{t[0]}[{t[1]}:{t[1]+n-1}]'
    def reads(q):
        st = q & 1; out = []
        for p in range(8):
            j = 8*p + q; a = AF(st, p); off = 64*(63 - j)
            out.append(f'ds_read_b64 {a[0]}[{a[1]}:{a[1]+1}], v10 offset:{off}')
            out.append(f'ds_read_b64 {a[0]}[{a[1]+2}:{a[1]+3}], v10 offset:{off+8}')
            out.append(f'ds_read_b128 {rg(BF(st, p),4)}, v11 offset:{512*p + 64*(7 - q)}')
        return out
    def mfmas(q):
        st = q & 1; out = []
        for p in range(8):
            for n in range(p, 8):
                c = '0' if (q == 0 and p == 0) else f'v[{ACC+4*n}:{ACC+4*n+3}]'
                out.append(f'v_mfma_f32_16x16x32_bf16 v[{ACC+4*n}:{ACC+4*n+3}], {rg(AF(st,p),4)}, {rg(BF(st,n-p),4)}, {c}')
        return out
    e('s_waitcnt lgkmcnt(0)')
    st(7)
    e.extend(reads(0)); e('s_waitcnt lgkmcnt(0)')
    for q in range(8):
        e.extend(interleave(mfmas(q), reads(q+1) if q < 7 else []))
        e('s_waitcnt lgkmcnt(0)')
    st(8)
    e('v_lshlrev_b32 v14, 4, v8'); e('v_lshlrev_b32 v15, 2, v9'); e('v_add_u32 v14, v14, v15')
    e('v_sub_u32 v15, %d, v14' % (2044 - 256*7)); e('v_lshlrev_b32 v15, 1, v15'); e('v_add_u32 v15, s57, v15')
    for n in range(8): e(f'ds_read_b64 v[{64+2*n}:{65+2*n}], v15 offset:{512*(7-n)}')
    e('v_lshlrev_b32 v13, 16, v13')
    e('v_and_b32 v84, 1, v9'); e('v_lshlrev_b32 v84, 9, v84')
    e('v_lshrrev_b32 v85, 1, v9'); e('v_lshlrev_b32 v85, 4, v85'); e('v_add_u32 v84, v84, v85')
    e('v_lshlrev_b32 v85, 5, v8'); e('v_add_u32 v84, v84, v85')
    e('s_lshl_b32 s10, s56, 12'); e(f's_add_u32 s10, s10, {WS_ZT}')
    e('s_waitcnt lgkmcnt(0)')
    for n in range(8):
        a = ACC + 4*n; k = 64 + 2*n
        e(f'v_lshlrev_b32 v80, 16, v{k}'); e(f'v_and_b32 v81, 0xffff0000, v{k}')
        e(f'v_lshlrev_b32 v82, 16, v{k+1}'); e(f'v_and_b32 v83, 0xffff0000, v{k+1}')
        e(f'v_fmac_f32 v{a+3}, v80, v13'); e(f'v_fmac_f32 v{a+2}, v81, v13')
        e(f'v_fmac_f32 v{a+1}, v82, v13'); e(f'v_fmac_f32 v{a}, v83, v13')
        e(f'v_cvt_pk_bf16_f32 v{96+2*n}, v{a}, v{a+1}'); e(f'v_cvt_pk_bf16_f32 v{97+2*n}, v{a+2}, v{a+3}')
    e('s_nop 1')
    for n in range(0, 8, 2):
        r = 96 + 2*n
        e(f'v_permlane16_swap_b32 v{r}, v{r+2}'); e(f'v_permlane16_swap_b32 v{r+1}, v{r+3}')
        e('s_nop 1')
        e(f'buffer_store_dwordx4 v[{r}:{r+3}], v84, {ssrd(SRD_WS)}, s10 offen offset:{512*n} sc1')
    vq.issue('z', 4)
    st(9)
```

```python
from fz_common import *

WB, XB = 0, 86016
TB = 151552
CSB = 159744
ACC = 16
def acc(fb, sb): return ACC + (fb*4 + sb)*4
def XF(st, sb): return st*16 + sb*4
def WF(st, fb): return 32 + st*28 + fb*4

def c_setup(e):
    e(f's_and_b32 s44, s{S_W4}, 1'); e(f's_lshr_b32 s45, s{S_W4}, 1')
    e('v_and_b32 v8, 15, v1'); e('v_lshrrev_b32 v9, 4, v1')
    e('s_lshl_b32 s10, s44, 6')
    e('v_add_u32 v10, s10, v8'); e('v_lshlrev_b32 v10, 7, v10')
    e('v_and_b32 v11, 7, v8'); e('v_xor_b32 v12, v9, v11'); e('v_lshlrev_b32 v12, 4, v12')
    e('v_add_u32 v2, v10, v12'); e(f'v_add_u32 v2, {XB}, v2'); e('v_xor_b32 v3, 64, v2')
    e('v_lshrrev_b32 v10, 2, v8'); e('v_lshlrev_b32 v11, 3, v9'); e('v_add_u32 v10, v10, v11')
    e('v_mul_u32_u24 v10, 448, v10')
    e('v_and_b32 v11, 3, v8'); e('v_lshlrev_b32 v11, 3, v11'); e('v_add_u32 v10, v10, v11')
    e('s_mul_i32 s10, s45, 224'); e(f's_add_u32 s10, s10, {WB}'); e('v_add_u32 v10, s10, v10')
    e('v_and_b32 v11, 1, v9'); e('v_lshlrev_b32 v11, 5, v11')
    e('v_add_u32 v12, v10, v11'); e('v_sub_u32 v13, v10, v11')
    e('s_cmp_eq_u32 s45, 0'); e('s_cselect_b64 vcc, -1, 0')
    e('v_cndmask_b32 v4, v13, v12, vcc'); e('v_cndmask_b32 v5, v12, v13, vcc')
    e(f'v_add_u32 v6, {3*14336}, v4'); e(f'v_add_u32 v7, {3*14336}, v5')

def c_reads(t):
    st = t & 1; stage = t >> 1; ks = t & 1
    xs = stage % 4; wsl = t % 6
    xr = [f'ds_read_b128 a[{XF(st,sb)}:{XF(st,sb)+3}], v{2+ks} offset:{xs*16384+sb*2048}' for sb in range(4)]
    wr = []
    for fb in range(7):
        for h in range(2):
            base = 4 + (fb & 1) + 2*(wsl >= 3)
            wr.append(f'ds_read_b64_tr_b16 a[{WF(st,fb)+2*h}:{WF(st,fb)+2*h+1}], v{base} offset:{(wsl%3)*14336+32*fb+1792*h}')
    return wr[:2] + xr + wr[2:]

def c_mfmas(t):
    st = t & 1
    out = []
    for fb in range(7):
        for sb in range(4):
            c = '0' if t == 0 else f'v[{acc(fb,sb)}:{acc(fb,sb)+3}]'
            out.append(f'v_mfma_f32_16x16x32_bf16 v[{acc(fb,sb)}:{acc(fb,sb)+3}], a[{WF(st,fb)}:{WF(st,fb)+3}], a[{XF(st,sb)}:{XF(st,sb)+3}], {c}')
    return out

def c_bias_loads(e):
    mk_srd(e, SRD_A, P_B1, 3584*2)
    e(f's_mul_i32 s10, s{S_NT1}, 224'); e('s_mul_i32 s11, s45, 112'); e('s_add_u32 s10, s10, s11')
    e('v_lshrrev_b32 v128, 4, v1'); e('v_lshlrev_b32 v128, 2, v128'); e('v_add_u32 v128, s10, v128'); e('v_lshlrev_b32 v128, 1, v128')
    for fb in range(7): e(f'buffer_load_dwordx2 v[{144+2*fb}:{145+2*fb}], v128, {ssrd(SRD_A)}, 0 offen offset:{32*fb}')
def c_bias_init(e):
    for fb in range(7):
        a = acc(fb, 0)
        e(f'v_lshlrev_b32 v{a}, 16, v{144+2*fb}'); e(f'v_and_b32 v{a+1}, 0xffff0000, v{144+2*fb}')
        e(f'v_lshlrev_b32 v{a+2}, 16, v{145+2*fb}'); e(f'v_and_b32 v{a+3}, 0xffff0000, v{145+2*fb}')
        for sb in range(1, 4):
            for r in range(4): e(f'v_mov_b32 v{acc(fb,sb)+r}, v{a+r}')

def c_epi_pre(e):
    e('v_and_b32 v128, 15, v1')
    e(f's_lshl_b32 s10, s{S_MT1}, 7'); e('s_lshl_b32 s11, s44, 6'); e('s_add_u32 s10, s10, s11')
    e('v_add_u32 v128, s10, v128'); e('v_lshlrev_b32 v128, 4, v128'); e(f'v_add_u32 v128, {WS_ST+8}, v128')
    e('v_lshrrev_b32 v129, 4, v1'); e('v_lshlrev_b32 v129, 4, v129')
    e('s_mul_i32 s10, s45, 448'); e(f's_add_u32 s10, s10, {CSB}'); e('v_add_u32 v129, s10, v129')
    e(f's_lshl_b32 s46, s{S_MT1}, 3'); e('s_lshl_b32 s11, s44, 2'); e('s_add_u32 s46, s46, s11')
    e('s_mul_i32 s46, s46, %d' % (112*1024))
    e(f's_mul_i32 s11, s{S_NT1}, %d' % (7*1024)); e('s_add_u32 s46, s46, s11')
    if WS_H: e(f's_add_u32 s46, s46, {WS_H}')
    e('v_lshlrev_b32 v130, 4, v1')
    e('s_mov_b32 s48, 0x%x' % f2u(C1)); e('s_mov_b32 s49, 0x%x' % f2u(C1))
    e('v_mov_b32 v156, 0x%x' % f2u(C0)); e('v_mov_b32 v157, 0x%x' % f2u(C0))

def c_stats_loads(e):
    WS = ssrd(SRD_WS)
    for sb in range(4):
        e(f'buffer_load_dwordx2 v[{8+2*sb}:{9+2*sb}], v128, {WS}, 0 offen offset:{sb*256} sc1')

def c_epilogue(e, st=lambda n: None, opt={}):
    SC = opt.get('x_hsc', ' sc1')
    WS = ssrd(SRD_WS)
    e('ds_read_b128 v[132:135], v129'); e('ds_read_b128 v[136:139], v129 offset:896')
    e('s_waitcnt vmcnt(0)')
    for sb in range(4): e(f'v_sub_f32 v{9+2*sb}, 0, v{9+2*sb}')
    e('v_mov_b32 v128, 1.0'); e('v_mov_b32 v131, 1.0')
    P = lambda r: f'v[{r}:{r+1}]'
    def gelu_blocks(blks, cs):
        o = []
        A = [acc(fb, sb) for fb, sb, _ in blks]; T = [148, 2]; R = [8 + 2*sb for fb, sb, _ in blks]
        prs = [(a + 2*h, t + 2*h, r, h) for a, t, r in zip(A, T, R) for h in range(2)]
        for a, t, r, h in prs: o.append(f'v_pk_fma_f32 {P(t)}, {P(r)}, {P(cs+2*h)}, {P(cs+4+2*h)} op_sel:[1,0,0] op_sel_hi:[1,1,1]')
        for a, t, r, h in prs: o.append(f'v_pk_fma_f32 {P(a)}, {P(r)}, {P(a)}, {P(t)} op_sel:[0,0,0] op_sel_hi:[0,1,1]')
        for a, t, r, h in prs: o.append(f'v_pk_mul_f32 {P(t)}, {P(a)}, {P(a)}')
        for a, t, r, h in prs: o.append(f'v_pk_fma_f32 {P(t)}, {P(t)}, s[48:49], v[156:157]')
        for a, t, r, h in prs: o.append(f'v_pk_mul_f32 {P(t)}, {P(t)}, {P(a)}')
        for a, t, r, h in prs: o += [f'v_exp_f32 v{t}, v{t}', f'v_exp_f32 v{t+1}, v{t+1}']
        for a, t, r, h in prs: o.append(f'v_pk_add_f32 {P(t)}, {P(t)}, v[128:129] op_sel:[0,0] op_sel_hi:[1,0]')
        for a, t, r, h in prs: o += [f'v_rcp_f32 v{t}, v{t}', f'v_rcp_f32 v{t+1}, v{t+1}']
        for a, t, r, h in prs: o.append(f'v_pk_mul_f32 {P(a)}, {P(a)}, {P(t)}')
        for (fb, sb, outreg), a in zip(blks, A):
            o.append(f'v_cvt_pk_bf16_f32 v{outreg}, v{a}, v{a+1}')
            o.append(f'v_cvt_pk_bf16_f32 v{outreg+1}, v{a+2}, v{a+3}')
        return o
    lab1 = e.newlabel('L_wn1'); labj = e.newlabel('L_wnj')
    e('s_cmp_eq_u32 s45, 1'); e(f's_cbranch_scc1 {lab1}')
    for wn in range(2):
        if wn == 1: e.label(lab1)
        for fb in range(7):
            lb = 7*wn + fb; pair = lb >> 1; half = lb & 1
            cs = 132 + 8*(fb & 1)
            st(32 + fb)
            e('s_waitcnt lgkmcnt(0)')
            if fb < 6:
                nc = 132 + 8*((fb+1) & 1)
                e(f'ds_read_b128 v[{nc}:{nc+3}], v129 offset:{(fb+1)*64}')
                e(f'ds_read_b128 v[{nc+4}:{nc+7}], v129 offset:{(fb+1)*64+896}')
            for sb0 in (0, 2):
                sbs = (sb0, sb0+1)
                if lb in (6, 7):
                    e.extend(gelu_blocks([(fb, sb, 152 + 2*(sb & 1)) for sb in sbs], cs))
                    for sb in sbs:
                        o = 152 + 2*(sb & 1)
                        e(f's_add_u32 s11, s46, {sb*112*1024 + pair*1024}')
                        e(f'buffer_store_dwordx2 v[{o}:{o+1}], v130, {WS}, s11 offen offset:{8*half}{SC}') if not opt.get('x_nohalf') else None
                elif half == 0:
                    e.extend(gelu_blocks([(fb, sb, acc(fb, sb)) for sb in sbs], cs))
                else:
                    e.extend(gelu_blocks([(fb, sb, acc(fb-1, sb)+2) for sb in sbs], cs))
                    for sb in sbs:
                        a0 = acc(fb-1, sb)
                        e(f's_add_u32 s11, s46, {sb*112*1024 + pair*1024}')
                        e(f'buffer_store_dwordx4 v[{a0}:{a0+3}], v130, {WS}, s11 offen{SC}')
        if wn == 0: e(f's_branch {labj}')
    e.label(labj)

LB = 132
SX0, SXL, SHI, SW0, SWL = 50, 51, 52, 54, 55
def l_setup(e):
    b = LB
    e(f'v_lshrrev_b32 v{b+11}, 3, v1'); e(f'v_and_b32 v{b+12}, 7, v1')
    e(f'v_xor_b32 v{b+12}, v{b+12}, v{b+11}'); e(f'v_lshlrev_b32 v{b+12}, 4, v{b+12}')
    e(f's_lshl_b32 s10, s{S_W4}, 5')
    e(f'v_add_u32 v{b+11}, s10, v{b+11}'); e(f'v_lshlrev_b32 v{b+11}, 11, v{b+11}')
    e(f'v_add_u32 v{b}, v{b+11}, v{b+12}')
    for q in range(1, 4): e(f'v_add_u32 v{b+q}, {q*(16384-1024)}, v{b}')
    e(f's_lshl_b32 s{SX0}, s{S_MT1}, 18')
    e(f's_lshl_b32 s{SXL}, s{S_W4}, 12'); e(f's_add_u32 s{SXL}, s{SXL}, {XB}')
def l_setup_w(e):
    b = LB
    for q in range(7):
        e(f'v_add_u32 v{b+11}, {64*q}, v1')
        e(f'v_mul_u32_u24 v{b+12}, 2341, v{b+11}'); e(f'v_lshrrev_b32 v{b+12}, 16, v{b+12}')
        e(f'v_mul_u32_u24 v{b+13}, 28, v{b+12}'); e(f'v_sub_u32 v{b+11}, v{b+11}, v{b+13}')
        e(f'v_lshrrev_b32 v{b+13}, 3, v{b+12}'); e(f'v_lshlrev_b32 v{b+13}, 1, v{b+13}')
        e(f'v_xor_b32 v{b+11}, v{b+11}, v{b+13}'); e(f'v_lshlrev_b32 v{b+11}, 4, v{b+11}')
        e(f'v_mul_u32_u24 v{b+12}, 7168, v{b+12}'); e(f'v_add_u32 v{b+11}, v{b+11}, v{b+12}')
        e(f'v_subrev_u32 v{b+4+q}, {1024*(q % 4)}, v{b+11}')
    e(f's_lshr_b32 s{SHI}, s{S_W4}, 1'); e(f's_and_b32 s53, s{S_W4}, 1')
    e(f's_mul_i32 s{SW0}, s{S_NT1}, 448')
    e('s_mul_i32 s10, s53, %d' % (16*7168)); e(f's_add_u32 s{SW0}, s{SW0}, s10')
    e(f's_mul_i32 s10, s{SHI}, %d' % (32*7168)); e(f's_sub_u32 s{SW0}, s{SW0}, s10')
    e(f's_mul_i32 s{SWL}, s{SHI}, %d' % (5*14336))
    e('s_mul_i32 s10, s53, 7168'); e(f's_add_u32 s{SWL}, s{SWL}, s10')
    if WB: e(f's_add_u32 s{SWL}, s{SWL}, {WB}')

def l_dma_x(stage):
    b = LB
    out = [f's_add_u32 m0, s{SXL}, {(stage % 4)*16384}', f's_add_u32 s11, s{SX0}, {stage*128}']
    for q in range(4): out.append(f'buffer_load_dwordx4 v{b+q}, {ssrd(SRD_X)}, s11 offen offset:{1024*q} lds')
    return out
def l_dma_w():
    b = LB
    out = [f's_mov_b32 m0, s{SWL}', 's_nop 0']
    for q in range(4): out.append(f'buffer_load_dwordx4 v{b+4+q}, {ssrd(SRD_W1)}, s{SW0} offen offset:{1024*q} lds')
    out += [f's_add_u32 m0, s{SWL}, 4096', 's_nop 0']
    for q in range(4, 7): out.append(f'buffer_load_dwordx4 v{b+4+q}, {ssrd(SRD_W1)}, s{SW0} offen offset:{1024*(q-4)} lds')
    return out
def l_adv_w():
    return [f's_add_u32 s{SW0}, s{SW0}, {64*7168}', f's_add_u32 s{SWL}, s{SWL}, 28672',
            f's_cmp_ge_u32 s{SWL}, {WB+86016}', 's_cselect_b32 s10, 86016, 0', f's_sub_u32 s{SWL}, s{SWL}, s10']

def period_code(i, spacing=5, gstart=0):
    dm = l_dma_x(i+3) + l_dma_w() + l_adv_w() if i <= 12 else []
    groups = []; cur = []
    for ins in dm:
        cur.append(ins)
        if ins.startswith('buffer_load'): groups.append(cur); cur = []
    if cur:
        groups[-1] = groups[-1] + cur
    def mix(mf, rd, gr):
        out = []; ri = 0; gi = 0
        for k, m in enumerate(mf):
            out.append(m)
            if ri < len(rd): out.append(rd[ri]); ri += 1
            if k >= gstart and (k - gstart) % spacing == 0 and gi < len(gr):
                out.extend(gr[gi]); gi += 1
        out.extend(rd[ri:])
        for g in gr[gi:]: out.extend(g)
        return out
    h = (len(groups) + 1)//2
    o = mix(c_mfmas(2*i), c_reads(2*i+1), groups[:h]) + ['s_waitcnt lgkmcnt(0)']
    o += mix(c_mfmas(2*i+1), c_reads(2*i+2) if 2*i+2 < 32 else [], groups[h:]) + ['s_waitcnt lgkmcnt(0)']
    return o
```

```python
import sys
from fz_common import *
import fz_g1 as g1, fz_g2 as g2, fz_prep as prep, fz_conv as conv, fz_ln as ln

KNAME = 'parallel_sum__ssm_conv_h3__mixer_channel_mlp__prompt_kernel'
WS = ssrd(SRD_WS)
LDS_NONCE = 163328
NON = f's{S_NONCE}'

def flag_store(e, soff, va=142):
    e(f'v_mov_b32 v{va}, 0'); e(f'v_mov_b32 v{va+1}, {NON}')
    e(f'buffer_store_dword v{va+1}, v{va}, {WS}, {soff} offen sc1')

def emit_prog(e, vq, fn):
    p = prep.Prog(); fn(p); sl = prep.Slicer(p); sl.emit(e, vq, 1e9, 99); assert sl.done()

def gen(name=KNAME, stamps=False, opt=None):
    opt = opt or {}
    BUD = opt.get('budget', 70); PUBD = opt.get('pubd', 2); W2P = opt.get('at_w2', 12)
    sl = prep.Slicer(prep.program(opt)); dq = VQ(); de = Em()
    for i in range(0, 16): sl.emit(de, dq, BUD, i)
    assert sl.done(), ('prep program does not fit', sl.i, len(sl.a))
    assert sl.marks['wrB'] > sl.marks['stA']
    pub0 = max(sl.marks['st'] + PUBD, 2); pub1 = sl.marks['pf1'] + PUBD; pub2 = sl.marks['pf2'] + PUBD
    assert pub1 <= 13 and pub2 <= 15 and sl.marks['wrB'] < 13, sl.marks
    if opt.get('verbose'): print('marks', sl.marks)

    e = Em()
    END = 'L_end_' + name
    e('s_cmp_ge_u32 s2, 256'); e(f's_cbranch_scc1 {END}')
    e('s_load_dwordx16 s[64:79], s[0:1], 0')
    e('s_load_dwordx8 s[80:87], s[0:1], 64')
    e('s_load_dwordx4 s[88:91], s[0:1], 96')
    e('v_lshrrev_b32 v1, 6, v0'); e('s_nop 1'); e(f'v_readfirstlane_b32 s{S_WAVE}, v1'); e('v_and_b32 v1, 63, v0')
    e(f's_and_b32 s{S_W4}, s{S_WAVE}, 3')
    e('s_and_b32 s10, s2, 7'); e('s_lshr_b32 s11, s2, 3')
    e(f's_and_b32 s{S_MT1}, s10, 1'); e(f's_lshl_b32 s{S_MT1}, s{S_MT1}, 3'); e('s_and_b32 s12, s11, 7'); e(f's_add_u32 s{S_MT1}, s{S_MT1}, s12')
    e(f's_lshr_b32 s{S_NT1}, s10, 1'); e(f's_lshl_b32 s{S_NT1}, s{S_NT1}, 2'); e('s_lshr_b32 s12, s11, 3'); e(f's_add_u32 s{S_NT1}, s{S_NT1}, s12')
    e(f's_and_b32 s{S_MT2}, s10, 3'); e(f's_lshl_b32 s{S_MT2}, s{S_MT2}, 2'); e('s_and_b32 s12, s11, 3'); e(f's_add_u32 s{S_MT2}, s{S_MT2}, s12')
    e(f's_lshr_b32 s{S_NT2}, s10, 2'); e(f's_lshl_b32 s{S_NT2}, s{S_NT2}, 3'); e('s_lshr_b32 s12, s11, 2'); e(f's_add_u32 s{S_NT2}, s{S_NT2}, s12')
    e('s_waitcnt lgkmcnt(0)')
    mk_srd(e, SRD_X, P_X, 2048*1024*2); mk_srd(e, SRD_W1, P_W1, 1024*3584*2); mk_srd(e, SRD_WS, P_WS, 0x10000000)
    if stamps:
        e('v_mov_b32 v158, 0'); e('v_mov_b32 v159, 0')
        tick(e, 0)
    st = (lambda n: tick(e, n)) if stamps else (lambda n: None)
    LAB_L = 'L_loader_' + name
    e(f's_cmp_ge_u32 s{S_WAVE}, 4'); e(f's_cbranch_scc1 {LAB_L}')

    def get_nonce(v=2):
        e(f'v_mov_b32 v{v}, {LDS_NONCE}'); e(f'ds_read_b32 v{v+1}, v{v}'); e('s_waitcnt lgkmcnt(0)'); e(f'v_readfirstlane_b32 {NON}, v{v+1}')

    g1.l_setup(e)
    e.extend(g1.l_dma_x(0))
    g1.l_setup_w(e)
    lab = e.newlabel('L_skip')
    e(f's_cmp_eq_u32 s{g1.SHI}, 1'); e(f's_cbranch_scc1 {lab}')
    e.extend(g1.l_dma_w()); e.label(lab); e.extend(g1.l_adv_w())
    e.extend(g1.l_dma_x(1)); e.extend(g1.l_dma_w()); e.extend(g1.l_adv_w())
    e.extend(g1.l_dma_x(2)); e.extend(g1.l_dma_w()); e.extend(g1.l_adv_w())
    g1.c_setup(e)
    e('s_waitcnt vmcnt(11)')
    e('s_barrier')
    e.extend(g1.c_reads(0)); e('s_waitcnt lgkmcnt(0)')
    st(1)
    for i in range(16):
        e('s_barrier')
        st(16 + i)
        if i == 13:
            lab = e.newlabel('L_s13')
            e(f's_cmp_eq_u32 s{g1.SHI}, 0'); e(f's_cbranch_scc1 {lab}'); e.extend(g1.l_dma_w()); e.label(lab)
        if i == 14: g1.c_epi_pre(e); get_nonce(2 if False else 143)
        if i == 15: g1.c_stats_loads(e)
        e.extend(g1.period_code(i, opt.get('spacing', 5), opt.get('gstart', 0)))
        if i <= 12: e('s_waitcnt vmcnt(11)')
        elif i == 13:
            lab = e.newlabel('L_w13'); lab2 = e.newlabel('L_w13j')
            e(f's_cmp_eq_u32 s{g1.SHI}, 0'); e(f's_cbranch_scc1 {lab}')
            e('s_waitcnt vmcnt(7)'); e(f's_branch {lab2}')
            e.label(lab); e('s_waitcnt vmcnt(0)'); e.label(lab2)
        elif i == 14: e('s_waitcnt vmcnt(0)')
    e('s_barrier')
    st(2)
    g1.c_epilogue(e, st, opt)
    st(7)
    e('s_barrier')
    g2.l_setup(e, cwave=True)
    e('s_waitcnt vmcnt(0)')
    e(f's_lshl_b32 s10, s{S_MT1}, 6'); e(f's_lshl_b32 s11, s{S_NT1}, 2'); e('s_add_u32 s10, s10, s11'); e(f's_add_u32 s10, s10, s{S_W4}')
    e('s_lshl_b32 s10, s10, 2'); e(f's_add_u32 s10, s10, {WS_FL + FL_HF}')
    flag_store(e, 's10')
    st(3)
    for i in range(3): e.extend(g2.l_dma_w(i))
    e('v_lshlrev_b32 v10, 2, v1'); e(f's_lshl_b32 s12, s{S_MT2}, 8'); e(f's_add_u32 s12, s12, {WS_FL + FL_HF}')
    poll_flags(e, SRD_WS, 10, 's12', NON, 11)
    st(8)
    for i in range(3): e.extend(g2.l_dma_h(i))
    g2.c_setup(e)
    e('s_waitcnt vmcnt(0)')
    st(9)
    e('s_barrier')
    e.extend(g2.c_reads(0)); e('s_waitcnt lgkmcnt(0)')
    st(4)
    for i in range(g2.NST):
        e('s_barrier')
        e.extend(interleave(g2.c_mfmas(i), g2.c_reads(i+1) if i+1 < g2.NST else []))
        if i == g2.NST - 2: g2.c_epi_pre(e)
        e('s_waitcnt lgkmcnt(0)')
    e('s_barrier')
    st(5)
    g2.c_epi(e)
    e('s_barrier')
    g2.final_store(e)
    if stamps:
        e('s_waitcnt vmcnt(0)'); st(6); tick_dump(e)
    e(f's_branch {END}')

    e.label(LAB_L)
    vq = VQ()
    e('v_mov_b32 v2, 0'); e(f's_mov_b32 s12, {WS_FL + FL_EP}')
    e(f'buffer_load_dword v132, v2, {WS}, s12 offen sc1'); vq.issue('tag')
    prep.pre_pf(e)
    emit_prog(e, vq, lambda p: prep.pf_w1(p, 3, 5))
    prep.pre_rest(e)
    emit_prog(e, vq, prep.stats_loads)
    prep.pre_cs(e)
    e('s_barrier')
    e('s_barrier')
    st(1)
    def wave0(body):
        lab = e.newlabel('L_w0')
        e(f's_cmp_eq_u32 s{S_W4}, 0'); e(f's_cbranch_scc0 {lab}'); body(); e.label(lab)
    sl = prep.Slicer(prep.program(opt))
    for i in range(16):
        if i == 0:
            vq.wait(e, 'tag')
            def body():
                e('v_add_u32 v3, 1, v132')
                e(f'v_mov_b32 v2, {LDS_NONCE}'); e('ds_write_b32 v2, v3'); e('s_waitcnt lgkmcnt(0)')
            wave0(body)
        if i == 1:
            get_nonce()
            e('s_lshl_b32 s10, s2, 2'); e(f's_add_u32 s10, s10, s{S_W4}'); e('s_lshl_b32 s10, s10, 2'); e(f's_add_u32 s59, s10, {WS_FL + FL_ZF}')
        if i == pub0:
            def body():
                e(f's_lshl_b32 s10, s{S_MT1}, 4'); e(f's_add_u32 s10, s10, s{S_NT1}'); e('s_lshl_b32 s10, s10, 2'); e(f's_add_u32 s10, s10, {WS_FL + FL_YF}')
                flag_store(e, 's10', va=2)
            wave0(body)
        if i == pub1:
            def body():
                e(f's_and_b32 s11, s{prep.S_XCD}, 1')
                e('s_mul_i32 s13, s11, 28'); e(f's_add_u32 s13, s13, s{prep.S_J}')
                e('s_lshl_b32 s11, s11, 2'); e(f's_add_u32 s11, s11, s{prep.S_J}'); e('s_add_u32 s11, s11, 28')
                e(f's_cmp_lt_u32 s{prep.S_J}, 28'); e('s_cselect_b32 s11, s13, s11')
                e(f's_lshr_b32 s10, s{prep.S_XCD}, 1'); e('s_lshl_b32 s10, s10, 6'); e('s_add_u32 s10, s10, s11')
                e('s_lshl_b32 s10, s10, 2'); e(f's_add_u32 s10, s10, {WS_FL + FL_CF}')
                flag_store(e, 's10', va=2)
            wave0(body)
        if i == pub2:
            def body():
                e(f's_lshl_b32 s10, s{prep.S_DT}, 4'); e(f's_add_u32 s10, s10, s{prep.S_ST}'); e('s_lshl_b32 s10, s10, 2'); e(f's_add_u32 s10, s10, {WS_FL + FL_UF}')
                flag_store(e, 's10', va=2)
            wave0(body)
        sl.emit(e, vq, BUD, i)
        if W2P <= i < W2P + 4:
            emit_prog(e, vq, lambda p: prep.pf_lin(p, P_W2, 3584*1024*2, 56*(i - W2P), 56, 224))
        if i == opt.get('at_ssm', 12):
            emit_prog(e, vq, lambda p: prep.pf_lin(p, P_SSM, 1024*2048*2, 0, 128, 128))
        if i == 13:
            e('v_and_b32 v9, 15, v1'); e('v_lshlrev_b32 v9, 2, v9'); e(f's_lshl_b32 s12, s{S_MT1}, 6'); e(f's_add_u32 s12, s12, {WS_FL + FL_YF}')
            e(f'buffer_load_dword v8, v9, {WS}, s12 offen sc1')
            e('v_lshlrev_b32 v10, 2, v1'); e(f's_lshr_b32 s13, s{S_NT1}, 2'); e('s_lshl_b32 s13, s13, 8'); e(f's_add_u32 s13, s13, {WS_FL + FL_CF}')
            e(f'buffer_load_dword v11, v10, {WS}, s13 offen sc1')
            vq.issue('smp', 2)
        if i == 14:
            vq.wait(e, 'smp')
            check_or_poll(e, SRD_WS, 9, 's12', NON, 8)
            check_or_poll(e, SRD_WS, 10, 's13', NON, 11)
            prep.cs_loads(e, vq)
        if i == 15:
            e('v_and_b32 v10, 15, v1'); e('v_lshlrev_b32 v10, 2, v10'); e('s_lshr_b32 s12, s2, 4'); e('s_lshl_b32 s12, s12, 6'); e(f's_add_u32 s12, s12, {WS_FL + FL_UF}')
            e(f'buffer_load_dword v12, v10, {WS}, s12 offen sc1'); vq.issue('smp2')
            vq.wait(e, 'csl'); prep.cs_finish(e)
            conv.base(e)
        if i == pub0 - 1: vq.wait(e, 'pst') if sl.marks.get('pf1') is None else None
        if i == pub1 - 1: vq.wait(e, 'pst')
        if i == pub2 - 1: vq.wait(e, 'kst')
        st(16 + i)
        e('s_barrier')
    assert sl.done()
    st(2)
    vq.wait_all(e)
    check_or_poll(e, SRD_WS, 10, 's12', NON, 12)
    if opt.get('x_noconvdma'):
        t_ = Em(); conv.setup(t_, vq); e.extend([l for l in t_.L if not l.endswith(' lds')])
    else: conv.setup(e, vq)
    st(10)
    conv.odd_copies(e, vq)
    e('s_barrier')
    conv.compute(e, vq, st)
    vq.wait_all(e)
    flag_store(e, 's59', va=2); vq.issue('zf')
    st(3)
    g2.l_setup(e)
    e('s_barrier')
    for i in range(3, g2.NS): e.extend(g2.l_dma_w(i)); e.extend(g2.l_dma_h(i)); vq.issue(f'g{i}', 6)
    st(4)
    e('s_barrier')
    for i in range(g2.NST):
        if i + g2.NS < g2.NST:
            e.extend(g2.l_dma_w(i+g2.NS)); e.extend(g2.l_dma_h(i+g2.NS)); vq.issue(f'g{i+g2.NS}', 6)
        if i == g2.NST - 5:
            e('v_lshlrev_b32 v10, 2, v1'); e(f's_lshl_b32 s12, s{S_NT2}, 8'); e(f's_add_u32 s12, s12, {WS_FL + FL_ZF}')
            e(f'buffer_load_dword v11, v10, {WS}, s12 offen sc1'); vq.issue('smp3')
        if i == g2.NST - 4:
            vq.wait(e, 'smp3')
            check_or_poll(e, SRD_WS, 10, 's12', NON, 11)
            g2.l_epi_loads(e); vq.issue('epi', 8)
        if i + 2 < g2.NST: vq.wait(e, f'g{i+2}')
        if i == g2.NST - 1: vq.wait_all(e)
        e('s_barrier')
    st(5)
    lab = e.newlabel('L_ep')
    e(f's_cmp_eq_u32 s{S_WAVE}, 4'); e(f's_cbranch_scc0 {lab}'); e('s_cmp_eq_u32 s2, 0'); e(f's_cbranch_scc0 {lab}')
    e(f's_mov_b32 s10, {WS_FL + FL_EP}'); flag_store(e, 's10', va=2)
    e.label(lab)
    e('s_barrier')
    g2.final_store(e)
    if stamps:
        e('s_waitcnt vmcnt(0)'); st(6); tick_dump(e)
    e.label(END)
    return kernel(name, e.text(), 256, 160)

def header():
    return open('ref_header.txt').read()

def full(stamps=False, opt=None):
    return header() + '; @launch grid=(256,1,1) block=(512,1,1) lds=163840\n' + HDR + gen(stamps=stamps, opt=opt)

NAMES_C = {0:'start',1:'main0',2:'main_end',7:'gelu',3:'h_ack',8:'hpoll',9:'pre3',4:'g2_start',5:'g2_end',6:'end'}
NAMES_L = {0:'start',1:'B0',2:'main_end',10:'cv_iss',7:'cv_data',8:'cv_mfma',9:'z_iss',3:'z_ack',4:'g2',5:'g2_end',6:'end'}

if __name__ == '__main__':
    import json
    out = sys.argv[1] if len(sys.argv) > 1 else 'fused.s'
    opt = json.loads(sys.argv[2]) if len(sys.argv) > 2 else {}
    opt['verbose'] = True
    t = full(opt=opt)
    open(out, 'w').write(t)
    print(len(t), 'bytes', t.count('\n'), 'lines')
```

```python
from asmlib import *
import struct, math

def f2u(x): return struct.unpack('<I', struct.pack('<f', x))[0]
C0 = -2.0 * math.sqrt(2.0 / math.pi) * math.log2(math.e)
C1 = C0 * 0.044715

import os
WS_BASE = int(os.environ.get('WS_BASE', '0'), 0)
WS_H   = WS_BASE + 0x0000000
WS_UR  = WS_BASE + 0x1000000
WS_ZT  = WS_BASE + 0x1500000
WS_ST  = WS_BASE + 0x1A00000
WS_CS  = WS_BASE + 0x1A10000
WS_FL  = WS_BASE + 0x1A60000
WS_TM  = WS_BASE + 0x1B00000
WS_XP  = WS_BASE + 0x2800000
WS_Y2  = WS_BASE + 0x2400000
UR_PITCH = 4224
FL_CF = 0x800
FL_YF, FL_UF, FL_HF, FL_ZF, FL_XF, FL_EP = 0x0, 0x4000, 0x1000, 0x2000, 0x3000, 0x8000
S_NONCE = 97

S_WG, S_WAVE, S_W4, S_MT1, S_NT1, S_MT2, S_NT2 = 2, 4, 5, 6, 7, 8, 9
SRD_X, SRD_W1, SRD_WS, SRD_A, SRD_B, SRD_C, SRD_D = 16, 20, 24, 28, 32, 36, 40
P_X, P_K, P_V, P_SK, P_SSM, P_D, P_BX, P_W1 = 64, 66, 68, 70, 72, 74, 76, 78
P_B1, P_W2, P_B2, P_OUT = 80, 82, 84, 86
P_DBG, P_WS = 88, 90
S_STB = 96

def ssrd(d): return f's[{d}:{d+3}]'
def mk_srd(e, d, p, nbytes): srd(e, d, p, p+1, nbytes)

def stamp(e, slot, vt=156):
    e('s_memtime s[92:93]'); e('s_memrealtime s[94:95]'); e('s_waitcnt lgkmcnt(0)')
    e(f'v_mov_b32 v{vt}, s92'); e(f'v_mov_b32 v{vt+1}, s94'); e(f'v_mov_b32 v{vt+2}, s{S_STB}')
    e(f'buffer_store_dwordx2 v[{vt}:{vt+1}], v{vt+2}, {ssrd(SRD_WS)}, 0 offen offset:{slot*8}')

class VQ:
    def __init__(self): self.q = []
    def issue(self, tag, n=1): self.q += [tag]*n
    def count_after(self, tags):
        last = -1
        for i, t in enumerate(self.q):
            if t in tags: last = i
        return len(self.q) - 1 - last
    def wait(self, e, tags):
        if isinstance(tags, str): tags = [tags]
        if not any(t in tags for t in self.q): return
        n = self.count_after(tags)
        assert n <= 63, n
        e(f's_waitcnt vmcnt({n})')
        self.q = self.q[len(self.q)-n:] if n else []
    def wait_all(self, e):
        e('s_waitcnt vmcnt(0)'); self.q = []

POLL_SLEEP = [4]
def poll_flags(e, srd_reg, voff, soff, expect, vtmp, nlanes=64, lab_prefix='L_poll'):
    lab = e.newlabel(lab_prefix); labx = e.newlabel(lab_prefix + 'x')
    e('s_mov_b32 s14, 0x200000')
    e.label(lab)
    e(f'buffer_load_dword v{vtmp}, v{voff}, {ssrd(srd_reg)}, {soff} offen sc1')
    e('s_waitcnt vmcnt(0)')
    e(f'v_cmp_ne_u32 vcc, {expect}, v{vtmp}')
    e('s_sub_u32 s14, s14, 1')
    e('s_cmp_eq_u32 s14, 0'); e(f's_cbranch_scc1 {labx}')
    e(f's_cbranch_vccz {labx}')
    e(f's_sleep {POLL_SLEEP[0]}')
    e(f's_branch {lab}')
    e.label(labx)

def check_or_poll(e, srd_reg, voff, soff, expect, vtmp):
    skip = e.newlabel('L_ok')
    e(f'v_cmp_ne_u32 vcc, {expect}, v{vtmp}')
    e('s_nop 0')
    e(f's_cbranch_vccz {skip}')
    poll_flags(e, srd_reg, voff, soff, expect, vtmp)
    e.label(skip)

def tick(e, idx, vreg=159):
    e('s_memtime s[92:93]'); e('s_memrealtime s[94:95]'); e('s_waitcnt lgkmcnt(0)')
    e(f'v_writelane_b32 v{vreg}, s92, {idx}'); e(f'v_writelane_b32 v{vreg-1}, s94, {idx}')
def tick_dump(e, vreg=159, bank=0):
    e(f's_lshl_b32 s10, s{S_WG}, 3'); e(f's_add_u32 s10, s10, s{S_WAVE}'); e('s_lshl_b32 s10, s10, 9'); e(f's_add_u32 s10, s10, {WS_TM + 0x100000 - bank*0x100000}')
    e('v_lshlrev_b32 v150, 3, v1')
    e(f'v_mov_b32 v152, v{vreg}'); e(f'v_mov_b32 v153, v{vreg-1}')
    e(f'buffer_store_dwordx2 v[152:153], v150, {ssrd(SRD_WS)}, s10 offen')
```

```python
from fz_common import *
NB, NO = 22, 12
NST = NB + NO; NS = 4
SLOT = 32768
ACCO, ACCX = 16, 48
def acc(which, db, sb): return (ACCO if which == 0 else ACCX) + (db*4 + sb)*4
def frag(st, kk, idx):
    if st == 0: return ('a', kk*32 + idx*4)
    return ('a', 64 + idx*4) if kk == 0 else ('v', 80 + idx*4)
def rg(t, n, o=0): return f'{t[0]}[{t[1]+o}:{t[1]+o+n-1}]'
XT = 2*SLOT; ZT = 3*SLOT
S_SIDE, S_T = 62, 63

def map_tiles(e):
    e(f's_and_b32 s{S_MT2}, s10, 3'); e(f's_lshl_b32 s{S_MT2}, s{S_MT2}, 2'); e('s_and_b32 s12, s11, 3'); e(f's_add_u32 s{S_MT2}, s{S_MT2}, s12')
    e('s_lshr_b32 s12, s11, 2'); e(f's_lshl_b32 s{S_NT2}, s12, 1'); e('s_lshr_b32 s12, s10, 2'); e(f's_add_u32 s{S_NT2}, s{S_NT2}, s12')

def c_setup(e):
    e(f's_and_b32 s44, s{S_W4}, 1'); e(f's_lshr_b32 s45, s{S_W4}, 1')
    e('v_and_b32 v8, 15, v1'); e('v_lshrrev_b32 v9, 4, v1')
    e('s_lshl_b32 s10, s44, 13'); e('v_lshlrev_b32 v2, 4, v1'); e('v_add_u32 v2, s10, v2')
    e('v_lshrrev_b32 v10, 2, v8'); e('v_lshlrev_b32 v11, 2, v9'); e('v_add_u32 v10, v10, v11')
    e('v_lshrrev_b32 v11, 1, v10'); e('v_and_b32 v11, 3, v11')
    e('v_lshlrev_b32 v10, 7, v10')
    e('v_and_b32 v12, 3, v8'); e('v_lshlrev_b32 v12, 3, v12'); e('v_add_u32 v10, v10, v12')
    e('v_add_u32 v10, 16384, v10')
    e('s_lshl_b32 s10, s45, 1')
    for db in range(2):
        e(f's_add_u32 s11, s10, {db}')
        e('v_xor_b32 v12, s11, v11'); e('v_lshlrev_b32 v12, 5, v12')
        e(f'v_add_u32 v{3+db}, v10, v12')
    for hb in range(NS//2):
        for i in range(3): e(f'v_add_u32 v{128+hb*3+i}, {hb*2*SLOT}, v{2+i}')

def c_reads(i):
    st = i & 1; sl = i % NS; hb = sl // 2; off = (sl % 2)*SLOT; both = i < NB
    out = []
    for kk in range(2):
        for w in range(2 if both else 1):
            for db in range(2):
                f = frag(st, kk, 4 + 2*w + db)
                for h in range(2):
                    out.append(f'ds_read_b64_tr_b16 {rg(f, 2, 2*h)}, v{129+hb*3+db} offset:{off + w*8192 + kk*4096 + h*2048}')
        for sb in range(4):
            out.append(f'ds_read_b128 {rg(frag(st, kk, sb), 4)}, v{128+hb*3} offset:{off+sb*2048+kk*1024}')
    return out
def c_mfmas(i):
    st = i & 1; out = []; both = i < NB
    for kk in range(2):
        for w in range(2 if both else 1):
            for db in range(2):
                for sb in range(4):
                    a = acc(w, db, sb)
                    c = '0' if (i == 0 and kk == 0) else f'v[{a}:{a+3}]'
                    out.append(f'v_mfma_f32_16x16x32_bf16 v[{a}:{a+3}], {rg(frag(st, kk, 4+2*w+db), 4)}, {rg(frag(st, kk, sb), 4)}, {c}')
    return out

def xp_addr(e, dst, other):
    e(f's_lshl_b32 {dst}, s{S_MT2}, 4'); e(f's_xor_b32 s11, s{S_NT2}, {other}'); e(f's_add_u32 {dst}, {dst}, s11')
    e(f's_lshl_b32 {dst}, {dst}, 2'); e(f's_add_u32 {dst}, {dst}, s{S_W4}')
def c_send(e):
    WS = ssrd(SRD_WS)
    xp_addr(e, 's46', 0); e('s_lshl_b32 s47, s46, 2'); e(f's_add_u32 s47, s47, {WS_FL + FL_XF}')
    e('s_lshl_b32 s46, s46, 13'); e(f's_add_u32 s46, s46, {WS_XP}')
    e('v_lshlrev_b32 v140, 4, v1'); e('s_nop 4')
    for q in range(8):
        if q % 4 == 0 and q: e('s_add_u32 s46, s46, 4096')
        e(f'buffer_store_dwordx4 v[{ACCX+4*q}:{ACCX+4*q+3}], v140, {WS}, s46 offen offset:{1024*(q % 4)} sc1')
def c_send_flag(e, nonce):
    e('s_waitcnt vmcnt(0)')
    e('v_mov_b32 v142, 0'); e(f'v_mov_b32 v143, {nonce}')
    e(f'buffer_store_dword v143, v142, {ssrd(SRD_WS)}, s47 offen sc1')
def c_recv_sample(e):
    xp_addr(e, 's46', 1); e('s_lshl_b32 s47, s46, 2'); e(f's_add_u32 s47, s47, {WS_FL + FL_XF}')
    e('s_lshl_b32 s46, s46, 13'); e(f's_add_u32 s46, s46, {WS_XP}')
    e('v_mov_b32 v142, 0')
    e(f'buffer_load_dword v141, v142, {ssrd(SRD_WS)}, s47 offen sc1')
def c_recv(e, nonce):
    WS = ssrd(SRD_WS)
    e('s_waitcnt vmcnt(0)')
    check_or_poll(e, SRD_WS, 142, 's47', nonce, 141)
    for q in range(8):
        if q % 4 == 0 and q: e('s_add_u32 s46, s46, 4096')
        e(f'buffer_load_dwordx4 v[{ACCX+4*q}:{ACCX+4*q+3}], v140, {WS}, s46 offen offset:{1024*(q % 4)} sc1')

def c_epi_pre(e):
    WS = ssrd(SRD_WS)
    mk_srd(e, SRD_A, P_B2, 1024*2)
    e(f's_lshl_b32 s10, s{S_MT2}, 7'); e('s_lshl_b32 s11, s44, 6'); e('s_add_u32 s10, s10, s11')
    e('v_add_u32 v112, s10, v8'); e('v_lshlrev_b32 v112, 4, v112'); e(f'v_add_u32 v112, {WS_ST}, v112')
    for sb in range(4):
        e(f'buffer_load_dwordx2 v[{144+2*sb}:{145+2*sb}], v112, {WS}, 0 offen offset:{sb*256} sc1')
    e(f's_lshl_b32 s10, s{S_NT2}, 6'); e('s_lshl_b32 s11, s45, 5'); e('s_add_u32 s10, s10, s11')
    e('v_lshlrev_b32 v113, 2, v9'); e('v_add_u32 v113, s10, v113'); e('v_lshlrev_b32 v113, 1, v113')
    for db in range(2):
        e(f'buffer_load_dwordx2 v[{152+2*db}:{153+2*db}], v113, {ssrd(SRD_A)}, 0 offen offset:{db*32}')
    e('s_lshl_b32 s10, s44, 13')
    e('v_lshlrev_b32 v114, 7, v8'); e('v_add_u32 v114, s10, v114')
    e('v_and_b32 v115, 1, v9'); e('v_lshlrev_b32 v115, 3, v115'); e('v_add_u32 v114, v114, v115')
    e('v_lshrrev_b32 v115, 1, v9'); e('v_and_b32 v116, 7, v8')
    e('s_lshl_b32 s10, s45, 2')
    for db in range(2):
        e(f's_add_u32 s11, s10, {2*db}')
        e('v_add_u32 v117, s11, v115'); e('v_xor_b32 v117, v117, v116'); e('v_lshlrev_b32 v117, 4, v117')
        e(f'v_add_u32 v{118+db}, v114, v117'); e(f'v_add_u32 v{118+db}, {XT}, v{118+db}')
    e('v_lshrrev_b32 v114, 2, v8'); e('v_lshlrev_b32 v115, 2, v9'); e('v_add_u32 v114, v114, v115')
    e('v_and_b32 v115, 7, v114')
    e('s_lshl_b32 s10, s45, 5'); e('v_add_u32 v114, s10, v114'); e('v_lshlrev_b32 v114, 8, v114')
    e('v_and_b32 v116, 3, v8'); e('v_lshlrev_b32 v116, 3, v116'); e('v_add_u32 v114, v114, v116')
    e(f'v_add_u32 v114, {ZT}, v114')
    e('s_lshl_b32 s10, s44, 2')
    for sb in range(4):
        e(f's_add_u32 s11, s10, {sb}')
        e('v_xor_b32 v117, s11, v115'); e('v_lshlrev_b32 v117, 5, v117')
        e(f'v_add_u32 v{120+sb}, v114, v117')

def c_epi(e):
    e('s_waitcnt vmcnt(0)')
    for r in range(32): e(f'v_add_f32 v{ACCO+r}, v{ACCO+r}, v{ACCX+r}')
    blocks = [(db, sb) for db in range(2) for sb in range(4)]
    def rd(i):
        db, sb = blocks[i]; r = 80 + 4*(i & 1)
        e(f'ds_read_b64 v[{r}:{r+1}], v{118+db} offset:{sb*2048}')
        e(f'ds_read_b64_tr_b16 v[{r+2}:{r+3}], v{120+sb} offset:{db*4096}')
    rd(0)
    for i, (db, sb) in enumerate(blocks):
        if sb == 0:
            e(f'v_lshlrev_b32 v124, 16, v{152+2*db}'); e(f'v_and_b32 v125, 0xffff0000, v{152+2*db}')
            e(f'v_lshlrev_b32 v126, 16, v{153+2*db}'); e(f'v_and_b32 v127, 0xffff0000, v{153+2*db}')
        a = acc(0, db, sb); r0 = 80 + 4*(i & 1)
        if i + 1 < len(blocks):
            rd(i+1); e('s_waitcnt lgkmcnt(%d)' % (2 if i == 0 else 3))
        else: e('s_waitcnt lgkmcnt(1)')
        e(f'v_lshlrev_b32 v88, 16, v{r0}'); e(f'v_and_b32 v89, 0xffff0000, v{r0}')
        e(f'v_lshlrev_b32 v90, 16, v{r0+1}'); e(f'v_and_b32 v91, 0xffff0000, v{r0+1}')
        e(f'v_lshlrev_b32 v92, 16, v{r0+2}'); e(f'v_and_b32 v93, 0xffff0000, v{r0+2}')
        e(f'v_lshlrev_b32 v94, 16, v{r0+3}'); e(f'v_and_b32 v95, 0xffff0000, v{r0+3}')
        m_, r1 = 144+2*sb, 145+2*sb
        for r in range(4): e(f'v_add_f32 v{a+r}, v{a+r}, v{124+r}')
        for r in range(4): e(f'v_add_f32 v{a+r}, v{a+r}, v{88+r}')
        for r in range(4): e(f'v_sub_f32 v{88+r}, v{88+r}, v{m_}')
        for r in range(4): e(f'v_mul_f32 v{88+r}, v{88+r}, v{r1}')
        for r in range(4): e(f'v_fmac_f32 v{a+r}, v{88+r}, v{92+r}')
        e(f'v_cvt_pk_bf16_f32 v96, v{a}, v{a+1}'); e(f'v_cvt_pk_bf16_f32 v97, v{a+2}, v{a+3}')
        e(f'ds_write_b64 v{118+db}, v[96:97] offset:{sb*2048}')
    e('s_waitcnt lgkmcnt(0)')

def final_store(e):
    mk_srd(e, SRD_B, P_OUT, 2048*1024*2)
    e('v_lshrrev_b32 v8, 3, v1'); e('v_and_b32 v9, 7, v1')
    e(f's_lshl_b32 s10, s{S_WAVE}, 4'); e('v_add_u32 v10, s10, v8')
    e('v_lshlrev_b32 v11, 7, v10'); e('v_xor_b32 v12, v9, v8'); e('v_lshlrev_b32 v12, 4, v12'); e('v_add_u32 v11, v11, v12')
    e(f'v_add_u32 v11, {XT}, v11')
    e(f's_lshl_b32 s10, s{S_MT2}, 7'); e('v_add_u32 v10, s10, v10'); e('v_lshlrev_b32 v10, 11, v10')
    e('v_lshlrev_b32 v9, 4, v9'); e('v_add_u32 v10, v10, v9')
    e(f's_lshl_b32 s10, s{S_NT2}, 7')
    for q in range(2): e(f'ds_read_b128 v[{16+4*q}:{19+4*q}], v11 offset:{q*1024}')
    for q in range(2):
        e(f's_waitcnt lgkmcnt({1-q})')
        e(f's_add_u32 s11, s10, {q*8*2048}')
        e(f'buffer_store_dwordx4 v[{16+4*q}:{19+4*q}], v10, {ssrd(SRD_B)}, s11 offen')

def l_setup(e):
    mk_srd(e, SRD_A, P_W2, 3584*1024*2)
    e('v_lshlrev_b32 v2, 4, v1'); e(f'v_add_u32 v3, {112*1024-2048}, v2')
    e(f's_and_b32 s55, s{S_NT2}, 1'); e(f's_mul_i32 s55, s55, {NB+NO}')
    e(f's_lshl_b32 s50, s{S_MT2}, 3'); e(f's_lshl_b32 s10, s{S_W4}, 1'); e('s_add_u32 s50, s50, s10'); e('s_mul_i32 s50, s50, %d' % (112*1024))
    if WS_H: e(f's_add_u32 s50, s50, {WS_H}')
    e(f's_lshl_b32 s51, s{S_W4}, 12')
    e('v_lshrrev_b32 v6, 3, v1'); e('v_and_b32 v7, 7, v1')
    e('v_lshrrev_b32 v8, 1, v7'); e('v_lshrrev_b32 v9, 1, v6'); e('v_xor_b32 v8, v8, v9'); e('v_lshlrev_b32 v8, 1, v8')
    e('v_and_b32 v9, 1, v7'); e('v_or_b32 v8, v8, v9'); e('v_lshlrev_b32 v8, 4, v8')
    e('v_lshlrev_b32 v6, 11, v6'); e('v_add_u32 v4, v6, v8'); e(f'v_add_u32 v5, {8*2048-1024}, v4')
    e(f's_lshl_b32 s52, s{S_W4}, 15'); e(f's_lshl_b32 s10, s{S_NT2}, 7'); e('s_add_u32 s54, s52, s10')
    e('s_xor_b32 s10, s10, 128'); e('s_add_u32 s10, s52, s10')
    e('s_mov_b32 s52, s54'); e('s_mov_b32 s54, s10')
    e(f's_lshl_b32 s53, s{S_W4}, 11'); e('s_add_u32 s53, s53, 16384')
    e('s_lshl_b32 s10, s55, 11'); e('s_add_u32 s56, s50, s10')
    e('s_lshl_b32 s10, s55, 17'); e('s_add_u32 s57, s52, s10'); e('s_add_u32 s58, s54, s10')
def l_dma_w(i):
    sl = (i % NS)*SLOT; both = i < NB
    out = [f's_add_u32 m0, s53, {sl}', f's_add_u32 s10, s{57 if both else 52}, {i*64*2048}']
    for q in range(2): out.append(f'buffer_load_dwordx4 v{4+q}, {ssrd(SRD_A)}, s10 offen offset:{1024*q} lds')
    if both:
        out += [f's_add_u32 m0, s53, {sl + 8192}', f's_add_u32 s10, s58, {i*64*2048}']
        for q in range(2): out.append(f'buffer_load_dwordx4 v{4+q}, {ssrd(SRD_A)}, s10 offen offset:{1024*q} lds')
    return out
def l_dma_h(i):
    sl = (i % NS)*SLOT; both = i < NB
    out = [f's_add_u32 m0, s51, {sl}', f's_add_u32 s10, s{56 if both else 50}, {i*2048}']
    for q in range(4): out.append(f'buffer_load_dwordx4 v{2+(q>>1)}, {ssrd(SRD_WS)}, s10 offen offset:{1024*q} sc1 lds')
    return out
def nw(i): return 4 if i < NB else 2
def l_epi_loads(e):
    e('v_lshrrev_b32 v10, 3, v1'); e('v_and_b32 v11, 7, v1'); e('v_xor_b32 v11, v11, v10'); e('v_lshlrev_b32 v11, 4, v11')
    e(f's_lshl_b32 s10, s{S_W4}, 5'); e('v_add_u32 v10, s10, v10'); e('v_lshlrev_b32 v10, 11, v10'); e('v_add_u32 v12, v10, v11')
    e(f's_lshl_b32 s12, s{S_MT2}, 18'); e(f's_lshl_b32 s11, s{S_NT2}, 7'); e('s_add_u32 s12, s12, s11')
    e(f's_lshl_b32 s11, s{S_W4}, 12'); e(f's_add_u32 m0, s11, {XT}')
    for q in range(4):
        e(f'v_add_u32 v13, {q*(16384-1024)}, v12')
        e(f'buffer_load_dwordx4 v13, {ssrd(SRD_X)}, s12 offen offset:{1024*q} lds')
    e('v_lshrrev_b32 v10, 4, v1'); e('v_and_b32 v11, 15, v1'); e('v_lshrrev_b32 v14, 1, v11'); e('v_and_b32 v11, 1, v11')
    e(f's_lshl_b32 s12, s{S_NT2}, 6'); e(f's_lshl_b32 s11, s{S_W4}, 4'); e('s_add_u32 s12, s12, s11'); e('s_lshl_b32 s12, s12, 12')
    e(f's_lshl_b32 s11, s{S_MT2}, 8'); e('s_add_u32 s12, s12, s11'); e(f's_add_u32 s12, s12, {WS_ZT}')
    e(f's_lshl_b32 s11, s{S_W4}, 12'); e(f's_add_u32 m0, s11, {ZT}')
    for q in range(4):
        e(f'v_add_u32 v15, {4*q}, v10'); e('v_and_b32 v16, 7, v15'); e('v_xor_b32 v16, v16, v14'); e('v_lshlrev_b32 v16, 1, v16')
        e('v_or_b32 v16, v16, v11'); e('v_lshlrev_b32 v16, 4, v16'); e('v_lshlrev_b32 v15, 12, v15'); e('v_add_u32 v15, v15, v16')
        e(f'v_subrev_u32 v15, {1024*q}, v15')
        e(f'buffer_load_dwordx4 v15, {ssrd(SRD_WS)}, s12 offen offset:{1024*q} sc1 lds')
```

```python
from fz_common import *
from fz_g1 import TB, CSB

class Prog:
    def __init__(self): self.a = []
    def __call__(self, s):
        for line in s.split('\n'):
            line = line.strip()
            if line: self.a.append([line])
    def atom(self, lines): self.a.append(list(lines))
    def vm(self, tag, n=1): self.a.append(('vm', tag, n))
    def wait(self, tags): self.a.append(('wait', tags))
    def bar(self): self.a.append(('bar',))
    def at(self, n): self.a.append(('at', n))
    def mark(self, name): self.a.append(('mark', name))

NT = ' nt'
T0, T1, T2 = 's61', 's62', 's63'
WS = ssrd(SRD_WS)
S_ROW0, S_ST, S_DT, S_CSST, S_CSLD, S_XCD, S_J, S_URA = 50, 51, 52, 54, 55, 53, 58, 60
S_CSM = 48
V_TW, V_TR, V_UR, V_CSO, V_XPF, V_WPF, V_LIN, V_LAM, V_CSL, V_ROW, V_C8, V_RG, V_SEL = 133, 134, 136, 138, 140, 141, 142, 143, 144, 145, 146, 147, 148
V_JUNK = 139

def wave_sum_dpp(regs):
    o = []
    for s in ['row_shr:1', 'row_shr:2', 'row_shr:4', 'row_shr:8']:
        for r in regs: o.append(f'v_add_f32_dpp v{r}, v{r}, v{r} {s} row_mask:0xf bank_mask:0xf bound_ctrl:1')
    for r in regs: o.append(f'v_add_f32_dpp v{r}, v{r}, v{r} row_bcast:15 row_mask:0xa bank_mask:0xf')
    for r in regs: o.append(f'v_add_f32_dpp v{r}, v{r}, v{r} row_bcast:31 row_mask:0xc bank_mask:0xf')
    o.append('s_nop 1')
    return o

def pre_pf(e):
    e(f's_and_b32 s{S_XCD}, s{S_WG}, 7'); e(f's_lshr_b32 s{S_J}, s{S_WG}, 3')
    e(f's_lshl_b32 {T0}, s{S_W4}, 6'); e(f'v_add_u32 v{V_LAM}, {T0}, v1')
    e(f'v_mul_u32_u24 v48, 2341, v{V_LAM}'); e('v_lshrrev_b32 v48, 16, v48')
    e('v_mul_u32_u24 v49, 28, v48'); e(f'v_sub_u32 v49, v{V_LAM}, v49')
    e('v_cmp_lt_u32 vcc, 13, v49'); e('v_lshlrev_b32 v48, 6, v48'); e('s_nop 0')
    e('v_cndmask_b32 v50, 0, 1, vcc'); e('v_add_u32 v48, v48, v50'); e('v_mul_u32_u24 v50, 14, v50'); e('v_sub_u32 v49, v49, v50')
    e(f's_lshl_b32 {T0}, s{S_J}, 1'); e(f'v_add_u32 v48, {T0}, v48'); e('v_mul_u32_u24 v48, 7168, v48')
    e('v_lshlrev_b32 v49, 7, v49'); e('v_add_u32 v48, v48, v49')
    e(f's_lshr_b32 {T0}, s{S_XCD}, 1'); e(f's_mul_i32 {T0}, {T0}, 1792'); e(f'v_add_u32 v{V_WPF}, {T0}, v48')
    e(f'v_lshlrev_b32 v{V_LIN}, 7, v{V_LAM}')

def pre_rest(e):
    mk_srd(e, SRD_A, P_K, 2048*1024*2); mk_srd(e, SRD_B, P_V, 2048*1024*2); mk_srd(e, SRD_C, P_SK, 1024*4*2)
    e(f's_lshl_b32 {T0}, s{S_MT1}, 7'); e(f's_lshl_b32 {T1}, s{S_NT1}, 3'); e(f's_add_u32 {T0}, {T0}, {T1}'); e(f's_lshl_b32 {T1}, s{S_W4}, 1')
    e(f's_add_u32 s{S_ROW0}, {T0}, {T1}')
    e(f's_lshr_b32 s{S_ST}, s{S_WG}, 4'); e(f's_and_b32 s{S_DT}, s{S_WG}, 15')
    e(f'v_and_b32 v{V_C8}, 7, v1'); e(f'v_lshrrev_b32 v{V_RG}, 3, v1')
    e(f's_lshl_b32 {T0}, s{S_W4}, 3'); e(f'v_add_u32 v{V_RG}, {T0}, v{V_RG}')
    e(f'v_lshlrev_b32 v48, 2, v{V_RG}'); e(f's_lshl_b32 {T0}, s{S_ST}, 7'); e(f'v_add_u32 v48, {T0}, v48')
    e(f'v_lshlrev_b32 v49, 4, v{V_C8}'); e(f's_lshl_b32 {T0}, s{S_DT}, 7'); e(f'v_add_u32 v49, {T0}, v49')
    e('v_lshlrev_b32 v48, 11, v48'); e(f'v_add_u32 v{V_ROW}, v48, v49')
    e(f'v_sub_u32 v48, 31, v{V_RG}'); e(f'v_lshlrev_b32 v49, 1, v{V_C8}'); e('v_xor_b32 v48, v48, v49'); e('v_lshlrev_b32 v48, 3, v48')
    e(f'v_lshlrev_b32 v49, 10, v{V_C8}'); e('v_add_u32 v48, v48, v49'); e(f'v_add_u32 v{V_TW}, {TB}, v48')
    e('v_lshrrev_b32 v48, 4, v1'); e(f's_lshl_b32 {T0}, s{S_W4}, 3'); e(f'v_add_u32 v48, {T0}, v48'); e('v_and_b32 v49, 15, v1')
    for q in range(2):
        e(f'v_add_u32 v50, {4*q}, v48'); e('v_lshrrev_b32 v51, 2, v50')
        e('v_xor_b32 v52, v51, v49'); e('v_lshlrev_b32 v52, 4, v52'); e('v_lshlrev_b32 v53, 8, v50'); e('v_add_u32 v52, v52, v53')
        e(f'v_add_u32 v{V_TR+q}, {TB}, v52')
        e('v_lshlrev_b32 v51, 3, v51'); e('v_and_b32 v50, 3, v50'); e('v_add_u32 v51, v51, v50')
        e(f'v_mul_u32_u24 v51, {UR_PITCH}, v51'); e('v_lshlrev_b32 v53, 4, v49'); e(f'v_add_u32 v{V_UR+q}, v51, v53')
    e(f's_lshl_b32 {T0}, s{S_DT}, 6'); e(f's_mul_i32 {T0}, {T0}, {UR_PITCH}'); e(f's_add_u32 {T0}, {T0}, {WS_UR + 3840}')
    e(f's_lshl_b32 {T1}, s{S_ST}, 8'); e(f's_sub_u32 s{S_URA}, {T0}, {T1}')

def pre_cs(e):
    e(f's_cmp_ge_u32 s{S_J}, 14'); e(f's_cselect_b32 {T0}, 1, 0'); e(f's_cmp_ge_u32 s{S_J}, 28'); e(f's_cselect_b32 {T0}, 0, {T0}')
    e(f's_mul_i32 {T1}, {T0}, 14'); e(f's_sub_u32 {T1}, s{S_J}, {T1}'); e(f's_min_u32 {T1}, {T1}, 13')
    e(f's_lshr_b32 {T2}, s{S_XCD}, 1'); e(f's_mul_i32 {T2}, {T2}, 14'); e(f's_add_u32 {T1}, {T1}, {T2}')
    e(f's_and_b32 {T2}, s{S_XCD}, 1'); e(f's_lshl_b32 {T2}, {T2}, 1'); e(f's_add_u32 {T0}, {T0}, {T2}')
    e(f's_lshl_b32 {T0}, {T0}, 2'); e(f's_add_u32 {T0}, {T0}, s{S_W4}')
    e(f's_lshl_b32 s{S_CSLD}, {T0}, 6'); e(f's_mul_i32 s{S_CSLD}, s{S_CSLD}, 7168'); e(f's_lshl_b32 {T2}, {T1}, 7'); e(f's_add_u32 s{S_CSLD}, s{S_CSLD}, {T2}')
    e(f's_mul_i32 {T0}, {T0}, 3584'); e(f's_lshl_b32 {T2}, {T1}, 6'); e(f's_add_u32 {T0}, {T0}, {T2}'); e(f's_lshl_b32 {T0}, {T0}, 2')
    e(f's_add_u32 s{S_CSST}, {T0}, {WS_CS}')
    e('v_lshrrev_b32 v48, 4, v1'); e('v_lshlrev_b32 v48, 1, v48'); e('v_bfe_u32 v49, v1, 3, 1'); e('v_add_u32 v48, v48, v49')
    e('v_mul_u32_u24 v48, 7168, v48'); e('v_and_b32 v49, 7, v1'); e('v_lshlrev_b32 v49, 4, v49'); e(f'v_add_u32 v{V_CSL}, v48, v49')
    e('v_and_b32 v49, 7, v1'); e('v_lshlrev_b32 v49, 5, v49'); e('v_lshrrev_b32 v50, 4, v1'); e('v_lshlrev_b32 v48, 4, v50'); e('v_add_u32 v49, v49, v48')
    e(f's_cmp_lt_u32 s{S_J}, 28'); e(f's_cselect_b32 {T0}, 0, 0x20000000'); e(f'v_add_u32 v{V_CSO}, {T0}, v49')
    e('v_bfe_u32 v48, v1, 3, 1'); e('v_cmp_gt_u32 vcc, 2, v50'); e(f'v_cmp_eq_u32 s[{S_CSM}:{S_CSM+1}], 1, v48'); e('s_nop 1')
    e(f's_and_b64 s[{S_CSM}:{S_CSM+1}], vcc, s[{S_CSM}:{S_CSM+1}]')
    e('v_and_b32 v48, 15, v1'); e('v_and_b32 v49, 1, v48'); e('v_lshlrev_b32 v49, 4, v49'); e('v_mov_b32 v50, 0x3f80'); e('v_lshlrev_b32 v49, v49, v50')
    e('v_lshrrev_b32 v48, 1, v48')
    for q in range(4):
        e(f'v_cmp_eq_u32 vcc, {q}, v48'); e('s_nop 1'); e(f'v_cndmask_b32 v{V_SEL+q}, 0, v49, vcc')

def pf_x(p, a, b):
    p.atom([f'v_cmp_gt_u32 vcc, {32*(b-a)}, v{V_LAM}', 'v_mov_b32 v6, 0x7fffffff', f's_mov_b32 {T0}, {a*128}', f'v_cndmask_b32 v5, v6, v{V_XPF}, vcc',
            f'buffer_load_dword v{V_JUNK}, v5, {ssrd(SRD_X)}, {T0} offen'])
    p.vm('pf')
def pf_w1(p, a, b):
    p.atom([f'v_cmp_gt_u32 vcc, {28*(b-a)}, v{V_LAM}', 'v_mov_b32 v6, 0x7fffffff', f's_mov_b32 {T0}, {a*458752}', f'v_cndmask_b32 v5, v6, v{V_WPF}, vcc',
            f'buffer_load_dword v{V_JUNK}, v5, {ssrd(SRD_W1)}, {T0} offen'])
    p.vm('pf')
def pf_lin(p, ptr, tot, first, n, per):
    p.atom([f's_mov_b32 s{SRD_D}, s{ptr}', f's_and_b32 s{SRD_D+1}, s{ptr+1}, 0xffff', f's_mov_b32 s{SRD_D+2}, {tot}', f's_mov_b32 s{SRD_D+3}, 0x20000',
            f'v_cmp_gt_u32 vcc, {n}, v{V_LAM}', 'v_mov_b32 v6, 0x7fffffff', f's_mul_i32 {T1}, s{S_WG}, {per*128}', f'v_cndmask_b32 v5, v6, v{V_LIN}, vcc',
            f's_add_u32 {T1}, {T1}, {first*128}', f'buffer_load_dword v{V_JUNK}, v5, {ssrd(SRD_D)}, {T1} offen'])
    p.vm('pf')

def stats_loads(p):
    p(f's_lshl_b32 {T0}, s{S_ROW0}, 11'); p('v_lshlrev_b32 v2, 4, v1')
    for rr in range(2):
        p(f'buffer_load_dwordx4 v[{8+8*rr}:{11+8*rr}], v2, {ssrd(SRD_X)}, {T0} offen offset:{2048*rr}'); p.vm('st')
        p(f'buffer_load_dwordx4 v[{12+8*rr}:{15+8*rr}], v2, {ssrd(SRD_X)}, {T0} offen offset:{2048*rr+1024}'); p.vm('st')

def cs_slab_loads(p, ts=range(8)):
    for t in ts:
        p(f's_add_u32 {T0}, s{S_CSLD}, {t*8*7168}')
        p(f'buffer_load_dwordx4 a[{4*t}:{4*t+3}], v{V_CSL}, {ssrd(SRD_W1)}, {T0} offen'); p.vm('cs')

def k_loads(p, rows):
    for i in rows:
        d = (i - 3)*2048
        p(f'v_add_u32 v7, {d}, v{V_ROW}' if d >= 0 else f'v_subrev_u32 v7, {-d}, v{V_ROW}')
        p(f'buffer_load_dwordx4 v[{72+4*i}:{75+4*i}], v7, {ssrd(SRD_A)}, 0 offen{NT}'); p.vm('kv')
def sk_loads(p):
    p(f'v_lshlrev_b32 v7, 6, v{V_C8}'); p(f's_lshl_b32 {T0}, s{S_DT}, 9'); p(f'v_add_u32 v7, {T0}, v7')
    for i in range(4):
        p(f'buffer_load_dwordx4 v[{116+4*i}:{119+4*i}], v7, {ssrd(SRD_C)}, 0 offen offset:{16*i}'); p.vm('kv')
def v_loads(p, rows):
    for i in rows:
        p(f'v_add_u32 v7, {i*2048}, v{V_ROW}')
        p(f'buffer_load_dwordx4 v[{100+4*i}:{103+4*i}], v7, {ssrd(SRD_B)}, 0 offen{NT}'); p.vm('kv')

def stats(p):
    p('v_mov_b32 v24, 0x3f803f80')
    for r in range(4): p(f'v_mov_b32 v{26+r}, 0')
    for d in range(8):
        for rr in range(2):
            p(f'v_dot2c_f32_bf16 v{26+rr}, v{8+8*rr+d}, v24')
            p(f'v_dot2c_f32_bf16 v{28+rr}, v{8+8*rr+d}, v{8+8*rr+d}')
    p('s_nop 3')
    p.atom(wave_sum_dpp([26, 27, 28, 29]))
    p.atom([f'v_readlane_b32 {T0}, v26, 63', f'v_readlane_b32 {T1}, v27, 63', 'v_mov_b32 v30, 0x3a800000', 's_nop 0',
            f'v_mul_f32 v26, {T0}, v30', f'v_mul_f32 v27, {T1}, v30',
            f'v_readlane_b32 {T0}, v28, 63', f'v_readlane_b32 {T1}, v29, 63', 'v_mov_b32 v31, 0x%x' % f2u(1e-5), 's_nop 0',
            f'v_mul_f32 v28, {T0}, v30', f'v_mul_f32 v29, {T1}, v30'])
    for rr in range(2):
        p(f'v_fma_f32 v{28+rr}, -v{26+rr}, v{26+rr}, v{28+rr}')
    for rr in range(2): p(f'v_max_f32 v{28+rr}, 0, v{28+rr}')
    a = []
    for rr in range(2): a.append(f'v_add_f32 v{32+rr}, v{28+rr}, v31')
    for rr in range(2): a.append(f'v_rsq_f32 v{32+rr}, v{32+rr}')
    for rr in range(2): a.append(f'v_mov_b32 v{36+4*rr}, v{26+rr}')
    for rr in range(2): a.append(f'v_mul_f32 v{34+rr}, v{32+rr}, v{32+rr}')
    for rr in range(2): a.append(f'v_fma_f32 v{34+rr}, v{34+rr}, v{28+rr}, v31')
    for rr in range(2): a.append(f'v_rsq_f32 v{34+rr}, v{34+rr}')
    for rr in range(2): a.append(f'v_mov_b32 v{37+4*rr}, v{32+rr}')
    for rr in range(2): a.append(f'v_mul_f32 v{38+4*rr}, v{32+rr}, v{34+rr}')
    for rr in range(2): a.append(f'v_mul_f32 v{39+4*rr}, v{38+4*rr}, v{26+rr}')
    p.atom(a)
    p.atom(['v_cmp_eq_u32 vcc, 1, v1', f'v_add_u32 v32, s{S_ROW0}, v1', 'v_lshlrev_b32 v32, 4, v32'] + [f'v_cndmask_b32 v{36+i}, v{36+i}, v{40+i}, vcc' for i in range(4)])
    p(f'v_add_u32 v32, {WS_ST}, v32')
    p.atom(['v_cmp_gt_u32 vcc, 2, v1', 's_and_saveexec_b64 s[98:99], vcc',
            f'buffer_store_dwordx4 v[36:39], v32, {WS}, 0 offen sc1', 's_mov_b64 exec, s[98:99]'])
    p.vm('pst')

def colsum(p):
    a = []
    for t in range(8):
        c = '0' if t == 0 else 'v[152:155]'
        a.append(f'v_mfma_f32_16x16x32_bf16 v[152:155], v[{V_SEL}:{V_SEL+3}], a[{4*t}:{4*t+3}], {c}')
    p.atom(a + ['s_nop 7', 's_nop 0'] + [f'v_add_f32_dpp v{152+r}, v{152+r}, v{152+r} row_shr:8 row_mask:0xf bank_mask:0xf bound_ctrl:1' for r in range(4)])
    p.atom(['s_mov_b64 s[98:99], exec', f's_mov_b64 exec, s[{S_CSM}:{S_CSM+1}]',
            f'buffer_store_dwordx4 v[152:155], v{V_CSO}, {WS}, s{S_CSST} offen sc1', 's_mov_b64 exec, s[98:99]'])
    p.vm('pst')

def kv_compute(p, pas):
    for cc in range(2):
        c2 = 2*pas + cc
        for i in range(7):
            p(f'v_lshlrev_b32 v{44+i}, 16, v{72+4*i+c2}'); p(f'v_and_b32 v{51+i}, 0xffff0000, v{72+4*i+c2}')
        for hh in range(2):
            b = 116 + 4*c2 + 2*hh
            p(f'v_lshlrev_b32 v{8+4*hh}, 16, v{b}'); p(f'v_and_b32 v{9+4*hh}, 0xffff0000, v{b}')
            p(f'v_lshlrev_b32 v{10+4*hh}, 16, v{b+1}'); p(f'v_and_b32 v{11+4*hh}, 0xffff0000, v{b+1}')
        for i in range(4):
            p(f'v_lshlrev_b32 v{16+i}, 16, v{100+4*i+c2}'); p(f'v_and_b32 v{20+i}, 0xffff0000, v{100+4*i+c2}')
        for j in (3, 2, 1, 0):
            for hh in range(2):
                kb = 44 + 7*hh; sb = 8 + 4*hh; rb = 24 + 4*hh
                for i in range(4):
                    p(f'v_mul_f32 v{rb+i}, v{kb+i}, v{sb+3}' if j == 3 else f'v_fmac_f32 v{rb+i}, v{kb+i+3-j}, v{sb+j}')
        for hh in range(2):
            for i in range(4): p(f'v_mul_f32 v{24+4*hh+i}, v{24+4*hh+i}, v{16+4*hh+i}')
        for hh in range(2):
            rb = 24 + 4*hh; o = 60 + cc*4 + hh*2
            p(f'v_cvt_pk_bf16_f32 v{o}, v{rb+3}, v{rb+2}'); p(f'v_cvt_pk_bf16_f32 v{o+1}, v{rb+1}, v{rb}')

def kv_write(p):
    p.atom([f'ds_write_b64 v{V_TW}, v[{60+2*i}:{61+2*i}] offset:{i*256}' for i in range(4)] + ['s_waitcnt lgkmcnt(0)'])

def kv_store(p, pas):
    a = [f'ds_read_b128 v[{32+4*q}:{35+4*q}], v{V_TR+q}' for q in range(2)]
    a += [f's_add_u32 {T0}, s{S_URA}, {4*pas*UR_PITCH}', 's_waitcnt lgkmcnt(0)']
    for q in range(2): a.append(f'buffer_store_dwordx4 v[{32+4*q}:{35+4*q}], v{V_UR+q}, {WS}, {T0} offen sc1')
    p.atom(a); p.vm('kst', 2)

def kv_pad(p):
    a = [f'v_mov_b32 v{68+i}, 0' for i in range(4)]
    a += [f's_lshl_b32 {T0}, s{S_W4}, 4', f'v_add_u32 v5, {T0}, v1', f'v_mul_u32_u24 v5, {UR_PITCH}, v5',
          f's_cmp_eq_u32 s{S_ST}, 0', f's_cselect_b32 {T0}, 0, 0x20000000', f'v_add_u32 v5, {T0}, v5',
          f's_lshl_b32 {T0}, s{S_DT}, 6', f's_mul_i32 {T0}, {T0}, {UR_PITCH}', f's_add_u32 {T0}, {T0}, {WS_UR + 4096}',
          'v_cmp_gt_u32 vcc, 16, v1', 's_and_saveexec_b64 s[98:99], vcc',
          f'buffer_store_dwordx4 v[68:71], v5, {WS}, {T0} offen sc1', 's_mov_b64 exec, s[98:99]']
    p.atom(a); p.vm('kst')

def cs_loads(e, vq):
    e(f's_lshl_b32 s10, s{S_W4}, 6'); e('v_add_u32 v72, s10, v1')
    e(f's_mul_i32 s11, s{S_NT1}, 224'); e('v_add_u32 v73, s11, v72')
    e('v_lshlrev_b32 v74, 2, v73'); e(f'v_add_u32 v74, {WS_CS}, v74')
    for p in range(16):
        e(f's_mov_b32 s10, {p*3584*4}')
        e(f'buffer_load_dword v{76+p}, v74, {WS}, s10 offen sc1')
    e('v_lshlrev_b32 v75, 1, v73')
    mk_srd(e, SRD_D, P_B1, 3584*2)
    e(f'buffer_load_ushort v92, v75, {ssrd(SRD_D)}, 0 offen')
    vq.issue('csl', 17)
def cs_finish(e):
    for p in range(1, 16, 2): e(f'v_add_f32 v{76+p-1}, v{76+p-1}, v{76+p}')
    for p in range(0, 16, 4): e(f'v_add_f32 v{76+p}, v{76+p}, v{76+p+2}')
    e('v_add_f32 v76, v76, v80'); e('v_add_f32 v84, v84, v88'); e('v_add_f32 v76, v76, v84')
    e('v_lshlrev_b32 v92, 16, v92')
    e('v_lshlrev_b32 v72, 2, v72'); e(f'v_add_u32 v72, {CSB}, v72')
    e('v_cmp_gt_u32 vcc, 0x%x, v72' % (CSB + 896))
    lab = e.newlabel('L_x')
    e('s_and_saveexec_b64 s[98:99], vcc'); e(f's_cbranch_execz {lab}')
    e('ds_write_b32 v72, v76'); e('ds_write_b32 v72, v92 offset:896')
    e.label(lab); e('s_mov_b64 exec, s[98:99]'); e('s_waitcnt lgkmcnt(0)')

def cost(line):
    if line.startswith('v_dot2'): return 2.0
    if line.startswith('v_mfma'): return 2.0
    if line.startswith('v_'): return 1.0
    if line.startswith('buffer_') or line.startswith('ds_'): return 2.0
    return 0.4

class Slicer:
    def __init__(self, prog):
        if isinstance(prog, tuple): self.ld, self.act, prog = prog
        else: self.ld, self.act = {}, None
        self.a = prog.a; self.i = 0; self.marks = {}
    def done(self): return self.i >= len(self.a)
    def emit_all(self, e, vq, p):
        for x in p.a:
            if isinstance(x, tuple):
                if x[0] == 'vm': vq.issue(x[1], x[2])
                else: raise ValueError(x)
            else:
                for l in x: e(l)
    def emit(self, e, vq, budget, period):
        c = 0.0
        for a in self.ld.get(period, []):
            p = Prog(); self.act(p, a); self.emit_all(e, vq, p)
            c += sum(sum(cost(l) for l in x) for x in p.a if not isinstance(x, tuple))
        first = True
        while self.i < len(self.a):
            x = self.a[self.i]
            if isinstance(x, tuple):
                if x[0] == 'at':
                    if period < x[1]: return
                    self.i += 1; continue
                self.i += 1
                if x[0] == 'vm': vq.issue(x[1], x[2])
                elif x[0] == 'wait': vq.wait(e, x[1])
                elif x[0] == 'mark': self.marks[x[1]] = period
                elif x[0] == 'bar': return
                continue
            cc = sum(cost(l) for l in x)
            if not (first and c < budget) and c + cc > budget: return
            for l in x: e(l)
            c += cc; self.i += 1; first = False

def program(o):
    g = o.get
    ld = g('ld', {0: ['w5-7'], 1: ['w7-9', 'k0-4'], 2: ['w9-11', 'k4-7', 'sk'], 3: ['w11-13', 'v0-4'], 4: ['w13-16'], 6: ['c0-8']})
    ld = {int(k): v for k, v in ld.items()}
    def act(p, a):
        if a == 'sk': return sk_loads(p)
        k, r = a[0], a[1:].split('-'); lo, hi = int(r[0]), int(r[1])
        if k == 'w': pf_w1(p, lo, hi)
        elif k == 'x': pf_x(p, lo, hi)
        elif k == 'k': k_loads(p, range(lo, hi))
        elif k == 'v': v_loads(p, range(lo, hi))
        elif k == 'c': cs_slab_loads(p, range(lo, hi))
    c = Prog()
    c.at(g('at_stc', 0)); c.wait(['st']); stats(c); c.mark('st')
    order = g('order', 'cs_first')
    if order == 'cs_first':
        c.at(g('at_kvc', 5)); c.wait(['kv']); kv_compute(c, 0); kv_write(c)
        c.bar()
        kv_store(c, 0); c.mark('stA')
        c.at(g('at_csc', 8)); c.wait(['cs']); colsum(c); c.mark('pf1')
        kv_compute(c, 1); c.mark('wrB'); kv_write(c); c.bar()
        kv_store(c, 1); kv_pad(c); c.mark('pf2')
    return ld, act, c
```

```python
import sys
from fz_common import *
import fz_g1 as g1, fz_g2h as g2, fz_prep as prep, fz_conv as conv, fz_ln as ln

KNAME = 'parallel_sum__ssm_conv_h3__mixer_channel_mlp__prompt_kernel'
WS = ssrd(SRD_WS)
LDS_NONCE = 163328
NON = f's{S_NONCE}'

def flag_store(e, soff, va=142):
    e(f'v_mov_b32 v{va}, 0'); e(f'v_mov_b32 v{va+1}, {NON}')
    e(f'buffer_store_dword v{va+1}, v{va}, {WS}, {soff} offen sc1')

def emit_prog(e, vq, fn):
    p = prep.Prog(); fn(p); sl = prep.Slicer(p); sl.emit(e, vq, 1e9, 99); assert sl.done()

def gen(name=KNAME, stamps=False, opt=None):
    opt = opt or {}
    BUD = opt.get('budget', 70); PUBD = opt.get('pubd', 2); W2P = opt.get('at_w2', 12)
    sl = prep.Slicer(prep.program(opt)); dq = VQ(); de = Em()
    for i in range(0, 16): sl.emit(de, dq, BUD, i)
    assert sl.done(), ('prep program does not fit', sl.i, len(sl.a))
    assert sl.marks['wrB'] > sl.marks['stA']
    pub0 = max(sl.marks['st'] + PUBD, 2); pub1 = sl.marks['pf1'] + PUBD; pub2 = sl.marks['pf2'] + 1
    assert pub1 <= 13 and sl.marks['pf2'] <= 15 and sl.marks['wrB'] <= 13, sl.marks
    if opt.get('verbose'): print('marks', sl.marks)

    e = Em()
    END = 'L_end_' + name
    e('s_cmp_ge_u32 s2, 256'); e(f's_cbranch_scc1 {END}')
    e('s_load_dwordx16 s[64:79], s[0:1], 0')
    e('s_load_dwordx8 s[80:87], s[0:1], 64')
    e('s_load_dwordx4 s[88:91], s[0:1], 96')
    e('v_lshrrev_b32 v1, 6, v0'); e('s_nop 1'); e(f'v_readfirstlane_b32 s{S_WAVE}, v1'); e('v_and_b32 v1, 63, v0')
    e(f's_and_b32 s{S_W4}, s{S_WAVE}, 3')
    e('s_and_b32 s10, s2, 7'); e('s_lshr_b32 s11, s2, 3')
    e(f's_and_b32 s{S_MT1}, s10, 1'); e(f's_lshl_b32 s{S_MT1}, s{S_MT1}, 3'); e('s_and_b32 s12, s11, 7'); e(f's_add_u32 s{S_MT1}, s{S_MT1}, s12')
    e(f's_lshr_b32 s{S_NT1}, s10, 1'); e(f's_lshl_b32 s{S_NT1}, s{S_NT1}, 2'); e('s_lshr_b32 s12, s11, 3'); e(f's_add_u32 s{S_NT1}, s{S_NT1}, s12')
    g2.map_tiles(e)
    e('s_waitcnt lgkmcnt(0)')
    mk_srd(e, SRD_X, P_X, 2048*1024*2); mk_srd(e, SRD_W1, P_W1, 1024*3584*2); mk_srd(e, SRD_WS, P_WS, 0x10000000)
    if stamps:
        e('v_mov_b32 v158, 0'); e('v_mov_b32 v159, 0')
        tick(e, 0)
    st = (lambda n: tick(e, n)) if stamps else (lambda n: None)
    LAB_L = 'L_loader_' + name
    e(f's_cmp_ge_u32 s{S_WAVE}, 4'); e(f's_cbranch_scc1 {LAB_L}')

    def get_nonce(v=2):
        e(f'v_mov_b32 v{v}, {LDS_NONCE}'); e(f'ds_read_b32 v{v+1}, v{v}'); e('s_waitcnt lgkmcnt(0)'); e(f'v_readfirstlane_b32 {NON}, v{v+1}')

    g1.l_setup(e)
    e.extend(g1.l_dma_x(0))
    g1.l_setup_w(e)
    lab = e.newlabel('L_skip')
    e(f's_cmp_eq_u32 s{g1.SHI}, 1'); e(f's_cbranch_scc1 {lab}')
    e.extend(g1.l_dma_w()); e.label(lab); e.extend(g1.l_adv_w())
    e.extend(g1.l_dma_x(1)); e.extend(g1.l_dma_w()); e.extend(g1.l_adv_w())
    e.extend(g1.l_dma_x(2)); e.extend(g1.l_dma_w()); e.extend(g1.l_adv_w())
    g1.c_setup(e)
    e('s_waitcnt vmcnt(11)')
    e('s_barrier')
    e.extend(g1.c_reads(0)); e('s_waitcnt lgkmcnt(0)')
    st(1)
    for i in range(16):
        e('s_barrier')
        st(16 + i)
        if i == 13:
            lab = e.newlabel('L_s13')
            e(f's_cmp_eq_u32 s{g1.SHI}, 0'); e(f's_cbranch_scc1 {lab}'); e.extend(g1.l_dma_w()); e.label(lab)
        if i == 14: g1.c_epi_pre(e); get_nonce(2 if False else 143)
        if i == 15: g1.c_stats_loads(e)
        e.extend(g1.period_code(i, opt.get('spacing', 5), opt.get('gstart', 0)))
        if i <= 12: e('s_waitcnt vmcnt(11)')
        elif i == 13:
            lab = e.newlabel('L_w13'); lab2 = e.newlabel('L_w13j')
            e(f's_cmp_eq_u32 s{g1.SHI}, 0'); e(f's_cbranch_scc1 {lab}')
            e('s_waitcnt vmcnt(7)'); e(f's_branch {lab2}')
            e.label(lab); e('s_waitcnt vmcnt(0)'); e.label(lab2)
        elif i == 14: e('s_waitcnt vmcnt(0)')
    e('s_barrier')
    st(2)
    g1.c_epilogue(e, st, opt)
    st(7)
    e('s_barrier')
    g2.l_setup(e)
    e('s_waitcnt vmcnt(0)')
    e(f's_lshl_b32 s10, s{S_MT1}, 6'); e(f's_lshl_b32 s11, s{S_NT1}, 2'); e('s_add_u32 s10, s10, s11'); e(f's_add_u32 s10, s10, s{S_W4}')
    e('s_lshl_b32 s10, s10, 2'); e(f's_add_u32 s10, s10, {WS_FL + FL_HF}')
    flag_store(e, 's10')
    st(3)
    for i in range(2): e.extend(g2.l_dma_w(i))
    e('v_lshlrev_b32 v10, 2, v1'); e(f's_lshl_b32 s12, s{S_MT2}, 8'); e(f's_add_u32 s12, s12, {WS_FL + FL_HF}')
    poll_flags(e, SRD_WS, 10, 's12', NON, 11)
    st(8)
    for i in range(2): e.extend(g2.l_dma_h(i))
    g2.c_setup(e)
    e('s_waitcnt vmcnt(0)')
    st(9)
    e('s_barrier')
    e.extend(g2.c_reads(0)); e('s_waitcnt lgkmcnt(0)')
    st(4)
    if stamps: e('v_mov_b32 v156, 0'); e('v_mov_b32 v157, 0')
    for i in range(g2.NST):
        e('s_barrier')
        if stamps: tick(e, i, 157)
        if i == g2.NB: st(40); g2.c_send(e)
        if i == g2.NB + opt.get('xf_delay', 4): g2.c_send_flag(e, NON)
        if i == g2.NST - 4: g2.c_recv_sample(e)
        if i == g2.NST - 3: g2.c_recv(e, NON); st(41)
        if i == g2.NST - 2: g2.c_epi_pre(e)
        e.extend(interleave(g2.c_mfmas(i), g2.c_reads(i+1) if i+1 < g2.NST else []))
        e('s_waitcnt lgkmcnt(0)')
    e('s_barrier')
    st(5)
    g2.c_epi(e)
    e('s_barrier')
    g2.final_store(e)
    if stamps:
        e('s_waitcnt vmcnt(0)'); st(6); tick_dump(e); tick_dump(e, 157, 1)
    e(f's_branch {END}')

    e.label(LAB_L)
    vq = VQ()
    e('v_mov_b32 v2, 0'); e(f's_mov_b32 s12, {WS_FL + FL_EP}')
    e(f'buffer_load_dword v132, v2, {WS}, s12 offen sc1'); vq.issue('tag')
    prep.pre_pf(e)
    emit_prog(e, vq, lambda p: prep.pf_w1(p, 3, 5))
    prep.pre_rest(e)
    emit_prog(e, vq, prep.stats_loads)
    prep.pre_cs(e)
    e('s_barrier')
    e('s_barrier')
    st(1)
    def wave0(body):
        lab = e.newlabel('L_w0')
        e(f's_cmp_eq_u32 s{S_W4}, 0'); e(f's_cbranch_scc0 {lab}'); body(); e.label(lab)
    sl = prep.Slicer(prep.program(opt))
    def uf_publish():
        vq.wait(e, 'kst')
        e(f's_lshl_b32 s10, s{prep.S_DT}, 4'); e(f's_add_u32 s10, s10, s{prep.S_ST}'); e('s_lshl_b32 s10, s10, 2'); e(f's_add_u32 s10, s10, s{S_W4}')
        e('s_lshl_b32 s10, s10, 2'); e(f's_add_u32 s10, s10, {WS_FL + FL_UF}')
        flag_store(e, 's10', va=2); vq.issue('uf')
    for i in range(16):
        if i == 0:
            vq.wait(e, 'tag')
            def body():
                e('v_add_u32 v3, 1, v132')
                e(f'v_mov_b32 v2, {LDS_NONCE}'); e('ds_write_b32 v2, v3'); e('s_waitcnt lgkmcnt(0)')
            wave0(body)
        if i == 1:
            get_nonce()
            e('s_lshl_b32 s10, s2, 2'); e(f's_add_u32 s10, s10, s{S_W4}'); e('s_lshl_b32 s10, s10, 2'); e(f's_add_u32 s59, s10, {WS_FL + FL_ZF}')
        if i == pub0:
            def body():
                e(f's_lshl_b32 s10, s{S_MT1}, 4'); e(f's_add_u32 s10, s10, s{S_NT1}'); e('s_lshl_b32 s10, s10, 2'); e(f's_add_u32 s10, s10, {WS_FL + FL_YF}')
                flag_store(e, 's10', va=2)
            wave0(body)
        if i == pub1:
            def body():
                e(f's_and_b32 s11, s{prep.S_XCD}, 1')
                e('s_mul_i32 s13, s11, 28'); e(f's_add_u32 s13, s13, s{prep.S_J}')
                e('s_lshl_b32 s11, s11, 2'); e(f's_add_u32 s11, s11, s{prep.S_J}'); e('s_add_u32 s11, s11, 28')
                e(f's_cmp_lt_u32 s{prep.S_J}, 28'); e('s_cselect_b32 s11, s13, s11')
                e(f's_lshr_b32 s10, s{prep.S_XCD}, 1'); e('s_lshl_b32 s10, s10, 6'); e('s_add_u32 s10, s10, s11')
                e('s_lshl_b32 s10, s10, 2'); e(f's_add_u32 s10, s10, {WS_FL + FL_CF}')
                flag_store(e, 's10', va=2)
            wave0(body)
        sl.emit(e, vq, BUD, i)
        if W2P <= i < W2P + 4:
            emit_prog(e, vq, lambda p: prep.pf_lin(p, P_W2, 3584*1024*2, 56*(i - W2P), 56, 224))
        if i == opt.get('at_ssm', 12):
            emit_prog(e, vq, lambda p: prep.pf_lin(p, P_SSM, 1024*2048*2, 0, 128, 128))
        if i == 13:
            e('v_and_b32 v41, 15, v1'); e('v_lshlrev_b32 v41, 2, v41'); e(f's_lshl_b32 s12, s{S_MT1}, 6'); e(f's_add_u32 s12, s12, {WS_FL + FL_YF}')
            e(f'buffer_load_dword v40, v41, {WS}, s12 offen sc1')
            e('v_lshlrev_b32 v43, 2, v1'); e(f's_lshr_b32 s13, s{S_NT1}, 2'); e('s_lshl_b32 s13, s13, 8'); e(f's_add_u32 s13, s13, {WS_FL + FL_CF}')
            e(f'buffer_load_dword v42, v43, {WS}, s13 offen sc1')
            vq.issue('smp', 2)
        if i == 14:
            vq.wait(e, 'smp')
            check_or_poll(e, SRD_WS, 41, 's12', NON, 40)
            check_or_poll(e, SRD_WS, 43, 's13', NON, 42)
            prep.cs_loads(e, vq)
        if i == 15:
            e('v_lshlrev_b32 v10, 2, v1'); e('s_lshr_b32 s12, s2, 4'); e('s_lshl_b32 s12, s12, 8'); e(f's_add_u32 s12, s12, {WS_FL + FL_UF}')
            e(f'buffer_load_dword v12, v10, {WS}, s12 offen sc1'); vq.issue('smp2')
            vq.wait(e, 'csl'); prep.cs_finish(e)
            conv.base(e)
        if i == pub0 - 1: vq.wait(e, 'pst') if sl.marks.get('pf1') is None else None
        if i == pub1 - 1: vq.wait(e, 'pst')
        if i == pub2: uf_publish()
        st(16 + i)
        e('s_barrier')
    assert sl.done()
    st(2)
    if pub2 >= 16: uf_publish()
    vq.wait_all(e)
    check_or_poll(e, SRD_WS, 10, 's12', NON, 12)
    if opt.get('x_noconvdma'):
        t_ = Em(); conv.setup(t_, vq); e.extend([l for l in t_.L if not l.endswith(' lds')])
    else: conv.setup(e, vq)
    st(10)
    conv.odd_copies(e, vq)
    e('s_barrier')
    conv.compute(e, vq, st)
    vq.wait_all(e)
    flag_store(e, 's59', va=2); vq.issue('zf')
    st(3)
    g2.l_setup(e)
    e('s_barrier')
    for i in range(2, g2.NS): e.extend(g2.l_dma_w(i)); e.extend(g2.l_dma_h(i)); vq.issue(f'g{i}', 4 + g2.nw(i))
    st(4)
    e('s_barrier')
    for i in range(g2.NST):
        if i + g2.NS < g2.NST:
            e.extend(g2.l_dma_w(i+g2.NS)); e.extend(g2.l_dma_h(i+g2.NS)); vq.issue(f'g{i+g2.NS}', 4 + g2.nw(i+g2.NS))
        if i == g2.NST - 4:
            e('v_lshlrev_b32 v10, 2, v1'); e(f's_lshl_b32 s12, s{S_NT2}, 8'); e(f's_add_u32 s12, s12, {WS_FL + FL_ZF}')
            e(f'buffer_load_dword v11, v10, {WS}, s12 offen sc1'); vq.issue('smp3')
        if i == g2.NST - 3:
            vq.wait(e, 'smp3')
            check_or_poll(e, SRD_WS, 10, 's12', NON, 11)
            g2.l_epi_loads(e); vq.issue('epi', 8)
        if i + 2 < g2.NST: vq.wait(e, f'g{i+2}')
        if i == g2.NST - 1: vq.wait_all(e)
        e('s_barrier')
    st(5)
    lab = e.newlabel('L_ep')
    e(f's_cmp_eq_u32 s{S_WAVE}, 4'); e(f's_cbranch_scc0 {lab}'); e('s_cmp_eq_u32 s2, 0'); e(f's_cbranch_scc0 {lab}')
    e(f's_mov_b32 s10, {WS_FL + FL_EP}'); flag_store(e, 's10', va=2)
    e.label(lab)
    e('s_barrier')
    g2.final_store(e)
    if stamps:
        e('s_waitcnt vmcnt(0)'); st(6); tick_dump(e)
    e.label(END)
    return kernel(name, e.text(), 256, 160)

def header():
    return open('ref_header.txt').read()

def full(stamps=False, opt=None):
    return header() + '; @launch grid=(256,1,1) block=(512,1,1) lds=163840\n' + HDR + gen(stamps=stamps, opt=opt)

NAMES_C = {0:'start',1:'main0',2:'main_end',7:'gelu',3:'h_ack',8:'hpoll',9:'pre3',4:'g2_start',40:'send',41:'recv',5:'g2_end',6:'end'}
NAMES_L = {0:'start',1:'B0',2:'main_end',10:'cv_iss',7:'cv_data',8:'cv_mfma',9:'z_iss',3:'z_ack',4:'g2',5:'g2_end',6:'end'}

if __name__ == '__main__':
    import json
    out = sys.argv[1] if len(sys.argv) > 1 else 'fused.s'
    opt = json.loads(sys.argv[2]) if len(sys.argv) > 2 else {}
    opt['verbose'] = True
    t = full(opt=opt)
    open(out, 'w').write(t)
    print(len(t), 'bytes', t.count('\n'), 'lines')
```

```python
from fz_common import *
NB, NO = 22, 12
NST = NB + NO; NS = 4
SLOT = 32768
ACCO, ACCX = 16, 48
def acc(which, db, sb): return (ACCO if which == 0 else ACCX) + (db*4 + sb)*4
def frag(st, kk, idx):
    if st == 0: return ('a', kk*32 + idx*4)
    return ('a', 64 + idx*4) if kk == 0 else ('v', 80 + idx*4)
def rg(t, n, o=0): return f'{t[0]}[{t[1]+o}:{t[1]+o+n-1}]'
XT = 2*SLOT; ZT = 3*SLOT
S_SIDE, S_T = 62, 63

def map_tiles(e):
    e(f's_and_b32 s{S_MT2}, s10, 3'); e(f's_lshl_b32 s{S_MT2}, s{S_MT2}, 2'); e('s_and_b32 s12, s11, 3'); e(f's_add_u32 s{S_MT2}, s{S_MT2}, s12')
    e('s_lshr_b32 s12, s11, 2'); e(f's_lshl_b32 s{S_NT2}, s12, 1'); e('s_lshr_b32 s12, s10, 2'); e(f's_add_u32 s{S_NT2}, s{S_NT2}, s12')

def c_setup(e):
    e(f's_and_b32 s44, s{S_W4}, 1'); e(f's_lshr_b32 s45, s{S_W4}, 1')
    e('v_and_b32 v8, 15, v1'); e('v_lshrrev_b32 v9, 4, v1')
    e('s_lshl_b32 s10, s44, 13'); e('v_lshlrev_b32 v2, 4, v1'); e('v_add_u32 v2, s10, v2')
    e('v_lshrrev_b32 v10, 2, v8'); e('v_lshlrev_b32 v11, 2, v9'); e('v_add_u32 v10, v10, v11')
    e('v_lshrrev_b32 v11, 1, v10'); e('v_and_b32 v11, 3, v11')
    e('v_lshlrev_b32 v10, 7, v10')
    e('v_and_b32 v12, 3, v8'); e('v_lshlrev_b32 v12, 3, v12'); e('v_add_u32 v10, v10, v12')
    e('v_add_u32 v10, 16384, v10')
    e('s_lshl_b32 s10, s45, 1')
    for db in range(2):
        e(f's_add_u32 s11, s10, {db}')
        e('v_xor_b32 v12, s11, v11'); e('v_lshlrev_b32 v12, 5, v12')
        e(f'v_add_u32 v{3+db}, v10, v12')
    for hb in range(NS//2):
        for i in range(3): e(f'v_add_u32 v{128+hb*3+i}, {hb*2*SLOT}, v{2+i}')

def c_reads(i):
    st = i & 1; sl = i % NS; hb = sl // 2; off = (sl % 2)*SLOT; both = i < NB
    out = []
    for kk in range(2):
        for w in range(2 if both else 1):
            for db in range(2):
                f = frag(st, kk, 4 + 2*w + db)
                for h in range(2):
                    out.append(f'ds_read_b64_tr_b16 {rg(f, 2, 2*h)}, v{129+hb*3+db} offset:{off + w*8192 + kk*4096 + h*2048}')
        for sb in range(4):
            out.append(f'ds_read_b128 {rg(frag(st, kk, sb), 4)}, v{128+hb*3} offset:{off+sb*2048+kk*1024}')
    return out
def c_mfmas(i):
    st = i & 1; out = []; both = i < NB
    for kk in range(2):
        for w in range(2 if both else 1):
            for db in range(2):
                for sb in range(4):
                    a = acc(w, db, sb)
                    c = '0' if (i == 0 and kk == 0) else f'v[{a}:{a+3}]'
                    out.append(f'v_mfma_f32_16x16x32_bf16 v[{a}:{a+3}], {rg(frag(st, kk, 4+2*w+db), 4)}, {rg(frag(st, kk, sb), 4)}, {c}')
    return out

def xp_addr(e, dst, other):
    e(f's_lshl_b32 {dst}, s{S_MT2}, 4'); e(f's_xor_b32 s11, s{S_NT2}, {other}'); e(f's_add_u32 {dst}, {dst}, s11')
    e(f's_lshl_b32 {dst}, {dst}, 2'); e(f's_add_u32 {dst}, {dst}, s{S_W4}')
def c_send_setup(e):
    xp_addr(e, 's46', 0); e('s_lshl_b32 s47, s46, 2'); e(f's_add_u32 s47, s47, {WS_FL + FL_XF}')
    e('s_lshl_b32 s46, s46, 13'); e(f's_add_u32 s46, s46, {WS_XP}'); e('s_add_u32 s48, s46, 4096')
    e('v_lshlrev_b32 v140, 4, v1'); e('s_nop 4')
def c_send_stores(half):
    WS = ssrd(SRD_WS)
    return [[f'buffer_store_dwordx4 v[{ACCX+4*q}:{ACCX+4*q+3}], v140, {WS}, s{46 if q < 4 else 48} offen offset:{1024*(q % 4)} sc1'] for q in range(4*half, 4*half+4)]
def c_send_flag(e, nonce):
    e('s_waitcnt vmcnt(0)')
    e('v_mov_b32 v142, 0'); e(f'v_mov_b32 v143, {nonce}')
    e(f'buffer_store_dword v143, v142, {ssrd(SRD_WS)}, s47 offen sc1')
def l_recv_sample(e):
    xp_addr(e, 's59', 1); e('s_lshl_b32 s60, s59, 2'); e(f's_add_u32 s60, s60, {WS_FL + FL_XF}')
    e('s_lshl_b32 s59, s59, 13'); e(f's_add_u32 s59, s59, {WS_XP}')
    e('v_mov_b32 v20, 0')
    e(f'buffer_load_dword v21, v20, {ssrd(SRD_WS)}, s60 offen sc1')
def l_recv(e, nonce):
    check_or_poll(e, SRD_WS, 20, 's60', nonce, 21)
    e(f's_mul_i32 s10, s{S_W4}, {SLOT}'); e(f's_add_u32 s10, s10, {16384 + 8192}'); e('v_lshlrev_b32 v22, 4, v1')
    for hf in range(2):
        e(f's_add_u32 m0, s10, {4096*hf}'); e(f's_add_u32 s11, s59, {4096*hf}')
        for q in range(4): e(f'buffer_load_dwordx4 v22, {ssrd(SRD_WS)}, s11 offen offset:{1024*q} sc1 lds')

def c_epi_pre(e):
    WS = ssrd(SRD_WS)
    mk_srd(e, SRD_A, P_B2, 1024*2)
    e(f's_lshl_b32 s10, s{S_MT2}, 7'); e('s_lshl_b32 s11, s44, 6'); e('s_add_u32 s10, s10, s11')
    e('v_add_u32 v112, s10, v8'); e('v_lshlrev_b32 v112, 4, v112'); e(f'v_add_u32 v112, {WS_ST}, v112')
    for sb in range(4):
        e(f'buffer_load_dwordx2 v[{144+2*sb}:{145+2*sb}], v112, {WS}, 0 offen offset:{sb*256} sc1')
    e(f's_lshl_b32 s10, s{S_NT2}, 6'); e('s_lshl_b32 s11, s45, 5'); e('s_add_u32 s10, s10, s11')
    e('v_lshlrev_b32 v113, 2, v9'); e('v_add_u32 v113, s10, v113'); e('v_lshlrev_b32 v113, 1, v113')
    for db in range(2):
        e(f'buffer_load_dwordx2 v[{152+2*db}:{153+2*db}], v113, {ssrd(SRD_A)}, 0 offen offset:{db*32}')
    e('s_lshl_b32 s10, s44, 13')
    e('v_lshlrev_b32 v114, 7, v8'); e('v_add_u32 v114, s10, v114')
    e('v_and_b32 v115, 1, v9'); e('v_lshlrev_b32 v115, 3, v115'); e('v_add_u32 v114, v114, v115')
    e('v_lshrrev_b32 v115, 1, v9'); e('v_and_b32 v116, 7, v8')
    e('s_lshl_b32 s10, s45, 2')
    for db in range(2):
        e(f's_add_u32 s11, s10, {2*db}')
        e('v_add_u32 v117, s11, v115'); e('v_xor_b32 v117, v117, v116'); e('v_lshlrev_b32 v117, 4, v117')
        e(f'v_add_u32 v{118+db}, v114, v117'); e(f'v_add_u32 v{118+db}, {XT}, v{118+db}')
    e('v_lshrrev_b32 v114, 2, v8'); e('v_lshlrev_b32 v115, 2, v9'); e('v_add_u32 v114, v114, v115')
    e('v_and_b32 v115, 7, v114')
    e('s_lshl_b32 s10, s45, 5'); e('v_add_u32 v114, s10, v114'); e('v_lshlrev_b32 v114, 8, v114')
    e('v_and_b32 v116, 3, v8'); e('v_lshlrev_b32 v116, 3, v116'); e('v_add_u32 v114, v114, v116')
    e(f'v_add_u32 v114, {ZT}, v114')
    e('s_lshl_b32 s10, s44, 2')
    for sb in range(4):
        e(f's_add_u32 s11, s10, {sb}')
        e('v_xor_b32 v117, s11, v115'); e('v_lshlrev_b32 v117, 5, v117')
        e(f'v_add_u32 v{120+sb}, v114, v117')

def c_epi(e):
    e(f's_mul_i32 s10, s{S_W4}, {SLOT}'); e(f's_add_u32 s10, s10, {16384 + 8192}'); e('v_lshlrev_b32 v98, 4, v1'); e('v_add_u32 v98, s10, v98')
    for q in range(8): e(f'ds_read_b128 v[{ACCX+4*q}:{ACCX+4*q+3}], v98 offset:{1024*q}')
    e('s_waitcnt vmcnt(0)')
    for q in range(8):
        e(f's_waitcnt lgkmcnt({7-q})')
        for r in range(4): e(f'v_add_f32 v{ACCO+4*q+r}, v{ACCO+4*q+r}, v{ACCX+4*q+r}')
    blocks = [(db, sb) for db in range(2) for sb in range(4)]
    def rd(i):
        db, sb = blocks[i]; r = 80 + 4*(i & 1)
        e(f'ds_read_b64 v[{r}:{r+1}], v{118+db} offset:{sb*2048}')
        e(f'ds_read_b64_tr_b16 v[{r+2}:{r+3}], v{120+sb} offset:{db*4096}')
    rd(0)
    for i, (db, sb) in enumerate(blocks):
        if sb == 0:
            e(f'v_lshlrev_b32 v124, 16, v{152+2*db}'); e(f'v_and_b32 v125, 0xffff0000, v{152+2*db}')
            e(f'v_lshlrev_b32 v126, 16, v{153+2*db}'); e(f'v_and_b32 v127, 0xffff0000, v{153+2*db}')
        a = acc(0, db, sb); r0 = 80 + 4*(i & 1)
        if i + 1 < len(blocks):
            rd(i+1); e('s_waitcnt lgkmcnt(%d)' % (2 if i == 0 else 3))
        else: e('s_waitcnt lgkmcnt(1)')
        e(f'v_lshlrev_b32 v88, 16, v{r0}'); e(f'v_and_b32 v89, 0xffff0000, v{r0}')
        e(f'v_lshlrev_b32 v90, 16, v{r0+1}'); e(f'v_and_b32 v91, 0xffff0000, v{r0+1}')
        e(f'v_lshlrev_b32 v92, 16, v{r0+2}'); e(f'v_and_b32 v93, 0xffff0000, v{r0+2}')
        e(f'v_lshlrev_b32 v94, 16, v{r0+3}'); e(f'v_and_b32 v95, 0xffff0000, v{r0+3}')
        m_, r1 = 144+2*sb, 145+2*sb
        for r in range(4): e(f'v_add_f32 v{a+r}, v{a+r}, v{124+r}')
        for r in range(4): e(f'v_add_f32 v{a+r}, v{a+r}, v{88+r}')
        for r in range(4): e(f'v_sub_f32 v{88+r}, v{88+r}, v{m_}')
        for r in range(4): e(f'v_mul_f32 v{88+r}, v{88+r}, v{r1}')
        for r in range(4): e(f'v_fmac_f32 v{a+r}, v{88+r}, v{92+r}')
        e(f'v_cvt_pk_bf16_f32 v96, v{a}, v{a+1}'); e(f'v_cvt_pk_bf16_f32 v97, v{a+2}, v{a+3}')
        e(f'ds_write_b64 v{118+db}, v[96:97] offset:{sb*2048}')
    e('s_waitcnt lgkmcnt(0)')

def final_store(e):
    mk_srd(e, SRD_B, P_OUT, 2048*1024*2)
    e('v_lshrrev_b32 v8, 3, v1'); e('v_and_b32 v9, 7, v1')
    e(f's_lshl_b32 s10, s{S_WAVE}, 4'); e('v_add_u32 v10, s10, v8')
    e('v_lshlrev_b32 v11, 7, v10'); e('v_xor_b32 v12, v9, v8'); e('v_lshlrev_b32 v12, 4, v12'); e('v_add_u32 v11, v11, v12')
    e(f'v_add_u32 v11, {XT}, v11')
    e(f's_lshl_b32 s10, s{S_MT2}, 7'); e('v_add_u32 v10, s10, v10'); e('v_lshlrev_b32 v10, 11, v10')
    e('v_lshlrev_b32 v9, 4, v9'); e('v_add_u32 v10, v10, v9')
    e(f's_lshl_b32 s10, s{S_NT2}, 7')
    for q in range(2): e(f'ds_read_b128 v[{16+4*q}:{19+4*q}], v11 offset:{q*1024}')
    for q in range(2):
        e(f's_waitcnt lgkmcnt({1-q})')
        e(f's_add_u32 s11, s10, {q*8*2048}')
        e(f'buffer_store_dwordx4 v[{16+4*q}:{19+4*q}], v10, {ssrd(SRD_B)}, s11 offen')

def l_setup(e):
    mk_srd(e, SRD_A, P_W2, 3584*1024*2)
    e('v_lshlrev_b32 v2, 4, v1'); e(f'v_add_u32 v3, {112*1024-2048}, v2')
    e(f's_and_b32 s55, s{S_NT2}, 1'); e(f's_mul_i32 s55, s55, {NB+NO}')
    e(f's_lshl_b32 s50, s{S_MT2}, 3'); e(f's_lshl_b32 s10, s{S_W4}, 1'); e('s_add_u32 s50, s50, s10'); e('s_mul_i32 s50, s50, %d' % (112*1024))
    if WS_H: e(f's_add_u32 s50, s50, {WS_H}')
    e(f's_lshl_b32 s51, s{S_W4}, 12')
    e('v_lshrrev_b32 v6, 3, v1'); e('v_and_b32 v7, 7, v1')
    e('v_lshrrev_b32 v8, 1, v7'); e('v_lshrrev_b32 v9, 1, v6'); e('v_xor_b32 v8, v8, v9'); e('v_lshlrev_b32 v8, 1, v8')
    e('v_and_b32 v9, 1, v7'); e('v_or_b32 v8, v8, v9'); e('v_lshlrev_b32 v8, 4, v8')
    e('v_lshlrev_b32 v6, 11, v6'); e('v_add_u32 v4, v6, v8'); e(f'v_add_u32 v5, {8*2048-1024}, v4')
    e(f's_lshl_b32 s52, s{S_W4}, 15'); e(f's_lshl_b32 s10, s{S_NT2}, 7'); e('s_add_u32 s54, s52, s10')
    e('s_xor_b32 s10, s10, 128'); e('s_add_u32 s10, s52, s10')
    e('s_mov_b32 s52, s54'); e('s_mov_b32 s54, s10')
    e(f's_lshl_b32 s53, s{S_W4}, 11'); e('s_add_u32 s53, s53, 16384')
    e('s_lshl_b32 s10, s55, 11'); e('s_add_u32 s56, s50, s10')
    e('s_lshl_b32 s10, s55, 17'); e('s_add_u32 s57, s52, s10'); e('s_add_u32 s58, s54, s10')
def l_dma_w(i):
    sl = (i % NS)*SLOT; both = i < NB
    out = [f's_add_u32 m0, s53, {sl}', f's_add_u32 s10, s{57 if both else 52}, {i*64*2048}']
    for q in range(2): out.append(f'buffer_load_dwordx4 v{4+q}, {ssrd(SRD_A)}, s10 offen offset:{1024*q} lds')
    if both:
        out += [f's_add_u32 m0, s53, {sl + 8192}', f's_add_u32 s10, s58, {i*64*2048}']
        for q in range(2): out.append(f'buffer_load_dwordx4 v{4+q}, {ssrd(SRD_A)}, s10 offen offset:{1024*q} lds')
    return out
def l_dma_h(i):
    sl = (i % NS)*SLOT; both = i < NB
    out = [f's_add_u32 m0, s51, {sl}', f's_add_u32 s10, s{56 if both else 50}, {i*2048}']
    for q in range(4): out.append(f'buffer_load_dwordx4 v{2+(q>>1)}, {ssrd(SRD_WS)}, s10 offen offset:{1024*q} sc1 lds')
    return out
def nw(i): return 4 if i < NB else 2
def l_epi_loads(e):
    e('v_lshrrev_b32 v10, 3, v1'); e('v_and_b32 v11, 7, v1'); e('v_xor_b32 v11, v11, v10'); e('v_lshlrev_b32 v11, 4, v11')
    e(f's_lshl_b32 s10, s{S_W4}, 5'); e('v_add_u32 v10, s10, v10'); e('v_lshlrev_b32 v10, 11, v10'); e('v_add_u32 v12, v10, v11')
    e(f's_lshl_b32 s12, s{S_MT2}, 18'); e(f's_lshl_b32 s11, s{S_NT2}, 7'); e('s_add_u32 s12, s12, s11')
    e(f's_lshl_b32 s11, s{S_W4}, 12'); e(f's_add_u32 m0, s11, {XT}')
    for q in range(4):
        e(f'v_add_u32 v13, {q*(16384-1024)}, v12')
        e(f'buffer_load_dwordx4 v13, {ssrd(SRD_X)}, s12 offen offset:{1024*q} lds')
    e('v_lshrrev_b32 v10, 4, v1'); e('v_and_b32 v11, 15, v1'); e('v_lshrrev_b32 v14, 1, v11'); e('v_and_b32 v11, 1, v11')
    e(f's_lshl_b32 s12, s{S_NT2}, 6'); e(f's_lshl_b32 s11, s{S_W4}, 4'); e('s_add_u32 s12, s12, s11'); e('s_lshl_b32 s12, s12, 12')
    e(f's_lshl_b32 s11, s{S_MT2}, 8'); e('s_add_u32 s12, s12, s11'); e(f's_add_u32 s12, s12, {WS_ZT}')
    e(f's_lshl_b32 s11, s{S_W4}, 12'); e(f's_add_u32 m0, s11, {ZT}')
    for q in range(4):
        e(f'v_add_u32 v15, {4*q}, v10'); e('v_and_b32 v16, 7, v15'); e('v_xor_b32 v16, v16, v14'); e('v_lshlrev_b32 v16, 1, v16')
        e('v_or_b32 v16, v16, v11'); e('v_lshlrev_b32 v16, 4, v16'); e('v_lshlrev_b32 v15, 12, v15'); e('v_add_u32 v15, v15, v16')
        e(f'v_subrev_u32 v15, {1024*q}, v15')
        e(f'buffer_load_dwordx4 v15, {ssrd(SRD_WS)}, s12 offen offset:{1024*q} sc1 lds')

def pf_setup(e):
    e(f's_and_b32 s10, s{S_WG}, 3'); e('s_lshl_b32 s10, s10, 5'); e(f's_lshr_b32 s11, s{S_WG}, 3'); e('s_add_u32 s10, s10, s11')
    e('s_lshl_b32 s49, s10, 10')
    e(f's_and_b32 s10, s{S_NT2}, 1'); e(f's_mul_i32 s10, s10, {(NB+NO)*64*2048}'); e('s_add_u32 s49, s49, s10')
    e('v_lshrrev_b32 v146, 3, v1'); e('v_lshlrev_b32 v146, 17, v146'); e('v_and_b32 v147, 7, v1'); e('v_lshlrev_b32 v147, 7, v147'); e('v_add_u32 v146, v146, v147')
def pf_batch(e, b, wave, srd_reg=SRD_A):
    lab = e.newlabel('L_w2pf')
    e(f's_cmp_eq_u32 s{S_W4}, {wave}'); e(f's_cbranch_scc0 {lab}')
    e(f's_add_u32 s10, s49, {b*8*64*2048}')
    e(f'buffer_load_dword v147, v146, {ssrd(srd_reg)}, s10 offen')
    e.label(lab)
```

```python
import sys
from fz_common import *
import fz_g1 as g1, fz_g2h as g2, fz_prep as prep, fz_conv as conv, fz_ln as ln

KNAME = 'parallel_sum__ssm_conv_h3__mixer_channel_mlp__prompt_kernel'
WS = ssrd(SRD_WS)
LDS_NONCE = 163328
NON = f's{S_NONCE}'

def flag_store(e, soff, va=142):
    e(f'v_mov_b32 v{va}, 0'); e(f'v_mov_b32 v{va+1}, {NON}')
    e(f'buffer_store_dword v{va+1}, v{va}, {WS}, {soff} offen sc1')

def emit_prog(e, vq, fn):
    p = prep.Prog(); fn(p); sl = prep.Slicer(p); sl.emit(e, vq, 1e9, 99); assert sl.done()

def gen(name=KNAME, stamps=False, opt=None):
    opt = opt or {}
    POLL_SLEEP[0] = opt.get('sleep', 4)
    BUD = opt.get('budget', 70); PUBD = opt.get('pubd', 2); W2P = opt.get('at_w2', 99)
    sl = prep.Slicer(prep.program(opt)); dq = VQ(); de = Em()
    for i in range(0, 16): sl.emit(de, dq, BUD, i)
    assert sl.done(), ('prep program does not fit', sl.i, len(sl.a))
    assert sl.marks['wrB'] > sl.marks['stA']
    pub0 = max(sl.marks['st'] + PUBD, 2); pub1 = sl.marks['pf1'] + PUBD; pub2 = sl.marks['pf2'] + 1
    assert pub1 <= 13 and sl.marks['pf2'] <= 15 and sl.marks['wrB'] <= 13, sl.marks
    if opt.get('verbose'): print('marks', sl.marks)

    e = Em()
    END = 'L_end_' + name
    e('s_cmp_ge_u32 s2, 256'); e(f's_cbranch_scc1 {END}')
    e('s_load_dwordx16 s[64:79], s[0:1], 0')
    e('s_load_dwordx8 s[80:87], s[0:1], 64')
    e('s_load_dwordx4 s[88:91], s[0:1], 96')
    e('v_lshrrev_b32 v1, 6, v0'); e('s_nop 1'); e(f'v_readfirstlane_b32 s{S_WAVE}, v1'); e('v_and_b32 v1, 63, v0')
    e(f's_and_b32 s{S_W4}, s{S_WAVE}, 3')
    e('s_and_b32 s10, s2, 7'); e('s_lshr_b32 s11, s2, 3')
    e(f's_and_b32 s{S_MT1}, s10, 1'); e(f's_lshl_b32 s{S_MT1}, s{S_MT1}, 3'); e('s_and_b32 s12, s11, 7'); e(f's_add_u32 s{S_MT1}, s{S_MT1}, s12')
    e(f's_lshr_b32 s{S_NT1}, s10, 1'); e(f's_lshl_b32 s{S_NT1}, s{S_NT1}, 2'); e('s_lshr_b32 s12, s11, 3'); e(f's_add_u32 s{S_NT1}, s{S_NT1}, s12')
    g2.map_tiles(e)
    e('s_waitcnt lgkmcnt(0)')
    mk_srd(e, SRD_X, P_X, 2048*1024*2); mk_srd(e, SRD_W1, P_W1, 1024*3584*2); mk_srd(e, SRD_WS, P_WS, 0x10000000)
    if stamps:
        e('v_mov_b32 v158, 0'); e('v_mov_b32 v159, 0')
        tick(e, 0)
    st = (lambda n: tick(e, n)) if stamps else (lambda n: None)
    LAB_L = 'L_loader_' + name
    e(f's_cmp_ge_u32 s{S_WAVE}, 4'); e(f's_cbranch_scc1 {LAB_L}')

    def get_nonce(v=2):
        e(f'v_mov_b32 v{v}, {LDS_NONCE}'); e(f'ds_read_b32 v{v+1}, v{v}'); e('s_waitcnt lgkmcnt(0)'); e(f'v_readfirstlane_b32 {NON}, v{v+1}')

    g1.l_setup(e)
    e.extend(g1.l_dma_x(0))
    g1.l_setup_w(e)
    lab = e.newlabel('L_skip')
    e(f's_cmp_eq_u32 s{g1.SHI}, 1'); e(f's_cbranch_scc1 {lab}')
    e.extend(g1.l_dma_w()); e.label(lab); e.extend(g1.l_adv_w())
    e.extend(g1.l_dma_x(1)); e.extend(g1.l_dma_w()); e.extend(g1.l_adv_w())
    e.extend(g1.l_dma_x(2)); e.extend(g1.l_dma_w()); e.extend(g1.l_adv_w())
    g1.c_setup(e)
    e('s_waitcnt vmcnt(11)')
    e('s_barrier')
    e.extend(g1.c_reads(0)); e('s_waitcnt lgkmcnt(0)')
    st(1)
    for i in range(16):
        e('s_barrier')
        st(16 + i)
        if i == 13:
            lab = e.newlabel('L_s13')
            e(f's_cmp_eq_u32 s{g1.SHI}, 0'); e(f's_cbranch_scc1 {lab}'); e.extend(g1.l_dma_w()); e.label(lab)
        if i == 14: g1.c_epi_pre(e); get_nonce(2 if False else 143)
        if i == 15: g1.c_stats_loads(e)
        e.extend(g1.period_code(i, opt.get('spacing', 5), opt.get('gstart', 0)))
        if i <= 12: e('s_waitcnt vmcnt(11)')
        elif i == 13:
            lab = e.newlabel('L_w13'); lab2 = e.newlabel('L_w13j')
            e(f's_cmp_eq_u32 s{g1.SHI}, 0'); e(f's_cbranch_scc1 {lab}')
            e('s_waitcnt vmcnt(7)'); e(f's_branch {lab2}')
            e.label(lab); e('s_waitcnt vmcnt(0)'); e.label(lab2)
        elif i == 14: e('s_waitcnt vmcnt(0)')
    e('s_barrier')
    st(2)
    g1.c_epilogue(e, st, opt)
    st(7)
    e('s_barrier')
    g2.l_setup(e)
    g2.pf_setup(e)
    e('s_waitcnt vmcnt(0)')
    e(f's_lshl_b32 s10, s{S_MT1}, 6'); e(f's_lshl_b32 s11, s{S_NT1}, 2'); e('s_add_u32 s10, s10, s11'); e(f's_add_u32 s10, s10, s{S_W4}')
    e('s_lshl_b32 s10, s10, 2'); e(f's_add_u32 s10, s10, {WS_FL + FL_HF}')
    flag_store(e, 's10')
    st(3)
    for i in range(2): e.extend(g2.l_dma_w(i))
    e('v_lshlrev_b32 v10, 2, v1'); e(f's_lshl_b32 s12, s{S_MT2}, 8'); e(f's_add_u32 s12, s12, {WS_FL + FL_HF}')
    poll_flags(e, SRD_WS, 10, 's12', NON, 11)
    st(8)
    for i in range(2): e.extend(g2.l_dma_h(i))
    g2.c_setup(e)
    e('s_waitcnt vmcnt(0)')
    st(9)
    e('s_barrier')
    e.extend(g2.c_reads(0)); e('s_waitcnt lgkmcnt(0)')
    st(4)
    if stamps: e('v_mov_b32 v156, 0'); e('v_mov_b32 v157, 0')
    XD = opt.get('xf_delay', 5)
    PFB = {int(k): v for k, v in opt.get('pfb', {0: 1, 5: 2, 13: 3, 19: 4}).items()}
    for i in range(g2.NST):
        e('s_barrier')
        if stamps: tick(e, i, 157)
        extra = []
        if i in PFB: g2.pf_batch(e, PFB[i], PFB[i] & 3)
        if i == g2.NB: st(40); g2.c_send_setup(e)
        if g2.NB <= i < g2.NB + 2: extra = g2.c_send_stores(i - g2.NB)
        if i == g2.NB + XD: g2.c_send_flag(e, NON)
        if i == g2.NST - 2: g2.c_epi_pre(e)
        rd = g2.c_reads(i+1) if i+1 < g2.NST else []
        mf = g2.c_mfmas(i)
        if extra:
            body = []; k = 0; nm = 0
            for ins in interleave(mf, rd):
                body.append(ins)
                if ins.startswith('v_mfma'):
                    nm += 1
                    if nm % 4 == 2 and k < len(extra): body.extend(extra[k]); k += 1
            for g_ in extra[k:]: body.extend(g_)
            e.extend(body)
        else: e.extend(interleave(mf, rd))
        e('s_waitcnt lgkmcnt(0)')
    e('s_barrier')
    st(5)
    g2.c_epi(e)
    e('s_barrier')
    g2.final_store(e)
    if stamps:
        e('s_waitcnt vmcnt(0)'); st(6); tick_dump(e); tick_dump(e, 157, 1)
    e(f's_branch {END}')

    e.label(LAB_L)
    vq = VQ()
    e('v_mov_b32 v2, 0'); e(f's_mov_b32 s12, {WS_FL + FL_EP}')
    e(f'buffer_load_dword v132, v2, {WS}, s12 offen sc1'); vq.issue('tag')
    if opt.get('tlb', 1):
        STEP = opt.get('tlb_step', 1 << 20)
        regs = [(P_WS, 0x10000000, WS_BASE, 0x3000000), (P_W2, 3584*1024*2, 0, 3584*1024*2), (P_W1, 1024*3584*2, 0, 1024*3584*2), (P_K, 1 << 22, 0, 1 << 22),
                (P_V, 1 << 22, 0, 1 << 22), (P_SSM, 1 << 22, 0, 1 << 22), (P_OUT, 1 << 22, 0, 1 << 22), (P_X, 1 << 22, 0, 1 << 22),
                (P_B1, 7168, 0, 4), (P_B2, 2048, 0, 4), (P_D, 2048, 0, 4), (P_SK, 8192, 0, 4)]
        labx = e.newlabel('L_tlbx')
        e(f's_cmp_eq_u32 s{S_W4}, 1'); e(f's_cbranch_scc0 {labx}')
        e('s_lshr_b32 s13, s2, 3')
        for r, (ptr, tot, off, span) in enumerate(regs):
            lab = e.newlabel('L_tlb')
            e(f's_cmp_eq_u32 s13, {r}'); e(f's_cbranch_scc0 {lab}')
            mk_srd(e, SRD_D, ptr, tot)
            n = max(1, min(64, (span + STEP - 1)//STEP))
            e(f's_mov_b32 s10, {STEP}'); e('v_mul_lo_u32 v4, s10, v1'); e(f's_mov_b32 s11, {off}')
            e('s_mov_b64 s[98:99], exec'); e(f's_bfm_b64 exec, {n}, 0') if n < 64 else e('s_mov_b64 exec, -1')
            e(f'buffer_load_dword v131, v4, {ssrd(SRD_D)}, s11 offen')
            e('s_mov_b64 exec, s[98:99]')
            e.label(lab)
        e.label(labx)
    prep.pre_pf(e)
    emit_prog(e, vq, lambda p: prep.pf_w1(p, 3, 5))
    prep.pre_rest(e)
    emit_prog(e, vq, prep.stats_loads)
    prep.pre_cs(e)
    e('s_barrier')
    e('s_barrier')
    st(1)
    def wave0(body):
        lab = e.newlabel('L_w0')
        e(f's_cmp_eq_u32 s{S_W4}, 0'); e(f's_cbranch_scc0 {lab}'); body(); e.label(lab)
    sl = prep.Slicer(prep.program(opt))
    def uf_publish():
        vq.wait(e, 'kst')
        e(f's_lshl_b32 s10, s{prep.S_DT}, 4'); e(f's_add_u32 s10, s10, s{prep.S_ST}'); e('s_lshl_b32 s10, s10, 2'); e(f's_add_u32 s10, s10, s{S_W4}')
        e('s_lshl_b32 s10, s10, 2'); e(f's_add_u32 s10, s10, {WS_FL + FL_UF}')
        flag_store(e, 's10', va=2); vq.issue('uf')
    for i in range(16):
        if i == 0:
            vq.wait(e, 'tag')
            def body():
                e('v_add_u32 v3, 1, v132')
                e(f'v_mov_b32 v2, {LDS_NONCE}'); e('ds_write_b32 v2, v3'); e('s_waitcnt lgkmcnt(0)')
            wave0(body)
        if i == 1:
            get_nonce()
            e('s_lshl_b32 s10, s2, 2'); e(f's_add_u32 s10, s10, s{S_W4}'); e('s_lshl_b32 s10, s10, 2'); e(f's_add_u32 s59, s10, {WS_FL + FL_ZF}')
        if i == pub0:
            def body():
                e(f's_lshl_b32 s10, s{S_MT1}, 4'); e(f's_add_u32 s10, s10, s{S_NT1}'); e('s_lshl_b32 s10, s10, 2'); e(f's_add_u32 s10, s10, {WS_FL + FL_YF}')
                flag_store(e, 's10', va=2)
            wave0(body)
        if i == pub1:
            def body():
                e(f's_and_b32 s11, s{prep.S_XCD}, 1')
                e('s_mul_i32 s13, s11, 28'); e(f's_add_u32 s13, s13, s{prep.S_J}')
                e('s_lshl_b32 s11, s11, 2'); e(f's_add_u32 s11, s11, s{prep.S_J}'); e('s_add_u32 s11, s11, 28')
                e(f's_cmp_lt_u32 s{prep.S_J}, 28'); e('s_cselect_b32 s11, s13, s11')
                e(f's_lshr_b32 s10, s{prep.S_XCD}, 1'); e('s_lshl_b32 s10, s10, 6'); e('s_add_u32 s10, s10, s11')
                e('s_lshl_b32 s10, s10, 2'); e(f's_add_u32 s10, s10, {WS_FL + FL_CF}')
                flag_store(e, 's10', va=2)
            wave0(body)
        sl.emit(e, vq, BUD, i)
        if W2P <= i < W2P + 4:
            emit_prog(e, vq, lambda p: prep.pf_lin(p, P_W2, 3584*1024*2, 56*(i - W2P), 56, 224))
        if i == opt.get('at_ssm', 13):
            emit_prog(e, vq, lambda p: prep.pf_lin(p, P_SSM, 1024*2048*2, 0, 128, 128))
        if i == 13:
            e('v_and_b32 v41, 15, v1'); e('v_lshlrev_b32 v41, 2, v41'); e(f's_lshl_b32 s12, s{S_MT1}, 6'); e(f's_add_u32 s12, s12, {WS_FL + FL_YF}')
            e(f'buffer_load_dword v40, v41, {WS}, s12 offen sc1')
            e('v_lshlrev_b32 v43, 2, v1'); e(f's_lshr_b32 s13, s{S_NT1}, 2'); e('s_lshl_b32 s13, s13, 8'); e(f's_add_u32 s13, s13, {WS_FL + FL_CF}')
            e(f'buffer_load_dword v42, v43, {WS}, s13 offen sc1')
            vq.issue('smp', 2)
        if i == 14:
            vq.wait(e, 'smp')
            check_or_poll(e, SRD_WS, 41, 's12', NON, 40)
            check_or_poll(e, SRD_WS, 43, 's13', NON, 42)
            prep.cs_loads(e, vq)
        if i == 15:
            e('v_lshlrev_b32 v10, 2, v1'); e('s_lshr_b32 s12, s2, 4'); e('s_lshl_b32 s12, s12, 8'); e(f's_add_u32 s12, s12, {WS_FL + FL_UF}')
            e(f'buffer_load_dword v12, v10, {WS}, s12 offen sc1'); vq.issue('smp2')
            vq.wait(e, 'csl'); prep.cs_finish(e)
            conv.base(e)
        if i == pub0 - 1: vq.wait(e, 'pst') if sl.marks.get('pf1') is None else None
        if i == pub1 - 1: vq.wait(e, 'pst')
        if i == pub2: uf_publish()
        st(16 + i)
        e('s_barrier')
    assert sl.done()
    st(2)
    if pub2 >= 16: uf_publish()
    vq.wait_all(e)
    check_or_poll(e, SRD_WS, 10, 's12', NON, 12)
    if opt.get('x_noconvdma'):
        t_ = Em(); conv.setup(t_, vq); e.extend([l for l in t_.L if not l.endswith(' lds')])
    else: conv.setup(e, vq)
    st(10)
    conv.odd_copies(e, vq)
    e('s_barrier')
    mk_srd(e, SRD_D, P_W2, 3584*1024*2); g2.pf_setup(e); g2.pf_batch(e, 0, opt.get('pf0w', 0), SRD_D)
    conv.compute(e, vq, st)
    vq.wait_all(e)
    flag_store(e, 's59', va=2); vq.issue('zf')
    st(3)
    g2.l_setup(e)
    e('s_barrier')
    for i in range(2, g2.NS): e.extend(g2.l_dma_w(i)); e.extend(g2.l_dma_h(i)); vq.issue(f'g{i}', 4 + g2.nw(i))
    st(4)
    e('s_barrier')
    for i in range(g2.NST):
        if i + g2.NS < g2.NST:
            e.extend(g2.l_dma_w(i+g2.NS)); e.extend(g2.l_dma_h(i+g2.NS)); vq.issue(f'g{i+g2.NS}', 4 + g2.nw(i+g2.NS))
        if i == g2.NST - 4:
            e('v_lshlrev_b32 v10, 2, v1'); e(f's_lshl_b32 s12, s{S_NT2}, 8'); e(f's_add_u32 s12, s12, {WS_FL + FL_ZF}')
            e(f'buffer_load_dword v11, v10, {WS}, s12 offen sc1'); vq.issue('smp3')
        if i == g2.NST - 5: g2.l_recv_sample(e); vq.issue('smp4')
        if i == g2.NST - 4:
            vq.wait(e, 'smp4'); g2.l_recv(e, NON); vq.issue('xp', 8)
        if i == g2.NST - 3:
            vq.wait(e, 'smp3')
            check_or_poll(e, SRD_WS, 10, 's12', NON, 11)
            g2.l_epi_loads(e); vq.issue('epi', 8)
        if i + 2 < g2.NST: vq.wait(e, f'g{i+2}')
        if i == g2.NST - 1: vq.wait_all(e)
        e('s_barrier')
    st(5)
    lab = e.newlabel('L_ep')
    e(f's_cmp_eq_u32 s{S_WAVE}, 4'); e(f's_cbranch_scc0 {lab}'); e('s_cmp_eq_u32 s2, 0'); e(f's_cbranch_scc0 {lab}')
    e(f's_mov_b32 s10, {WS_FL + FL_EP}'); flag_store(e, 's10', va=2)
    e.label(lab)
    e('s_barrier')
    g2.final_store(e)
    if stamps:
        e('s_waitcnt vmcnt(0)'); st(6); tick_dump(e)
    e.label(END)
    return kernel(name, e.text(), 256, 160)

def header():
    return open('ref_header.txt').read()

def full(stamps=False, opt=None):
    return header() + '; @launch grid=(256,1,1) block=(512,1,1) lds=163840\n' + HDR + gen(stamps=stamps, opt=opt)

NAMES_C = {0:'start',1:'main0',2:'main_end',7:'gelu',3:'h_ack',8:'hpoll',9:'pre3',4:'g2_start',40:'send',5:'g2_end',6:'end'}
NAMES_L = {0:'start',1:'B0',2:'main_end',10:'cv_iss',7:'cv_data',8:'cv_mfma',9:'z_iss',3:'z_ack',4:'g2',5:'g2_end',6:'end'}

if __name__ == '__main__':
    import json
    out = sys.argv[1] if len(sys.argv) > 1 else 'fused.s'
    opt = json.loads(sys.argv[2]) if len(sys.argv) > 2 else {}
    opt['verbose'] = True
    t = full(opt=opt)
    open(out, 'w').write(t)
    print(len(t), 'bytes', t.count('\n'), 'lines')
```

```python
import sys
from fz_common import *
import fz_g1 as g1, fz_g2h as g2, fz_prep as prep, fz_conv as conv, fz_ln as ln

KNAME = 'parallel_sum__ssm_conv_h3__mixer_channel_mlp__prompt_kernel'
WS = ssrd(SRD_WS)
LDS_NONCE = 163328
NON = f's{S_NONCE}'

def flag_store(e, soff, va=142):
    e(f'v_mov_b32 v{va}, 0'); e(f'v_mov_b32 v{va+1}, {NON}')
    e(f'buffer_store_dword v{va+1}, v{va}, {WS}, {soff} offen sc1')

def emit_prog(e, vq, fn):
    p = prep.Prog(); fn(p); sl = prep.Slicer(p); sl.emit(e, vq, 1e9, 99); assert sl.done()

def gen(name=KNAME, stamps=False, opt=None):
    opt = opt or {}
    POLL_SLEEP[0] = opt.get('sleep', 4)
    BUD = opt.get('budget', 70); PUBD = opt.get('pubd', 2); W2P = opt.get('at_w2', 99)
    sl = prep.Slicer(prep.program(opt)); dq = VQ(); de = Em()
    for i in range(0, 16): sl.emit(de, dq, BUD, i)
    assert sl.done(), ('prep program does not fit', sl.i, len(sl.a))
    assert sl.marks['wrB'] > sl.marks['stA']
    pub0 = max(sl.marks['st'] + PUBD, 2); pub1 = sl.marks['pf1'] + PUBD; pub2 = sl.marks['pf2'] + 1
    assert pub1 <= 13 and sl.marks['pf2'] <= 15 and sl.marks['wrB'] <= 13, sl.marks
    if opt.get('verbose'): print('marks', sl.marks)

    e = Em()
    END = 'L_end_' + name
    e('s_cmp_ge_u32 s2, 256'); e(f's_cbranch_scc1 {END}')
    e('s_load_dwordx16 s[64:79], s[0:1], 0')
    e('s_load_dwordx8 s[80:87], s[0:1], 64')
    e('s_load_dwordx4 s[88:91], s[0:1], 96')
    e('v_lshrrev_b32 v1, 6, v0'); e('s_nop 1'); e(f'v_readfirstlane_b32 s{S_WAVE}, v1'); e('v_and_b32 v1, 63, v0')
    e(f's_and_b32 s{S_W4}, s{S_WAVE}, 3')
    e('s_and_b32 s10, s2, 7'); e('s_lshr_b32 s11, s2, 3')
    e(f's_and_b32 s{S_MT1}, s10, 1'); e(f's_lshl_b32 s{S_MT1}, s{S_MT1}, 3'); e('s_and_b32 s12, s11, 7'); e(f's_add_u32 s{S_MT1}, s{S_MT1}, s12')
    e(f's_lshr_b32 s{S_NT1}, s10, 1'); e(f's_lshl_b32 s{S_NT1}, s{S_NT1}, 2'); e('s_lshr_b32 s12, s11, 3'); e(f's_add_u32 s{S_NT1}, s{S_NT1}, s12')
    g2.map_tiles(e)
    e('s_waitcnt lgkmcnt(0)')
    mk_srd(e, SRD_X, P_X, 2048*1024*2); mk_srd(e, SRD_W1, P_W1, 1024*3584*2); mk_srd(e, SRD_WS, P_WS, 0x10000000)
    if stamps:
        e('v_mov_b32 v158, 0'); e('v_mov_b32 v159, 0')
        tick(e, 0)
    st = (lambda n: tick(e, n)) if stamps else (lambda n: None)
    LAB_L = 'L_loader_' + name
    e(f's_cmp_ge_u32 s{S_WAVE}, 4'); e(f's_cbranch_scc1 {LAB_L}')

    def get_nonce(v=2):
        e(f'v_mov_b32 v{v}, {LDS_NONCE}'); e(f'ds_read_b32 v{v+1}, v{v}'); e('s_waitcnt lgkmcnt(0)'); e(f'v_readfirstlane_b32 {NON}, v{v+1}')

    g1.l_setup(e)
    e.extend(g1.l_dma_x(0))
    g1.l_setup_w(e)
    lab = e.newlabel('L_skip')
    e(f's_cmp_eq_u32 s{g1.SHI}, 1'); e(f's_cbranch_scc1 {lab}')
    e.extend(g1.l_dma_w()); e.label(lab); e.extend(g1.l_adv_w())
    e.extend(g1.l_dma_x(1)); e.extend(g1.l_dma_w()); e.extend(g1.l_adv_w())
    e.extend(g1.l_dma_x(2)); e.extend(g1.l_dma_w()); e.extend(g1.l_adv_w())
    g1.c_setup(e)
    e('s_waitcnt vmcnt(11)')
    e('s_barrier')
    e.extend(g1.c_reads(0)); e('s_waitcnt lgkmcnt(0)')
    st(1)
    for i in range(16):
        e('s_barrier')
        st(16 + i)
        if i == 13:
            lab = e.newlabel('L_s13')
            e(f's_cmp_eq_u32 s{g1.SHI}, 0'); e(f's_cbranch_scc1 {lab}'); e.extend(g1.l_dma_w()); e.label(lab)
        if i == 14: g1.c_epi_pre(e); get_nonce(2 if False else 143)
        if i == 15: g1.c_stats_loads(e)
        e.extend(g1.period_code(i, opt.get('spacing', 5), opt.get('gstart', 0)))
        if i <= 12: e('s_waitcnt vmcnt(11)')
        elif i == 13:
            lab = e.newlabel('L_w13'); lab2 = e.newlabel('L_w13j')
            e(f's_cmp_eq_u32 s{g1.SHI}, 0'); e(f's_cbranch_scc1 {lab}')
            e('s_waitcnt vmcnt(7)'); e(f's_branch {lab2}')
            e.label(lab); e('s_waitcnt vmcnt(0)'); e.label(lab2)
        elif i == 14: e('s_waitcnt vmcnt(0)')
    e('s_barrier')
    st(2)
    g1.c_epilogue(e, st, opt)
    st(7)
    e('s_barrier')
    g2.l_setup(e)
    g2.pf_setup(e)
    e('s_waitcnt vmcnt(0)')
    e(f's_lshl_b32 s10, s{S_MT1}, 6'); e(f's_lshl_b32 s11, s{S_NT1}, 2'); e('s_add_u32 s10, s10, s11'); e(f's_add_u32 s10, s10, s{S_W4}')
    e('s_lshl_b32 s10, s10, 2'); e(f's_add_u32 s10, s10, {WS_FL + FL_HF}')
    flag_store(e, 's10')
    st(3)
    for i in range(2): e.extend(g2.l_dma_w(i))
    e('v_lshlrev_b32 v10, 2, v1'); e(f's_lshl_b32 s12, s{S_MT2}, 8'); e(f's_add_u32 s12, s12, {WS_FL + FL_HF}')
    poll_flags(e, SRD_WS, 10, 's12', NON, 11)
    st(8)
    for i in range(2): e.extend(g2.l_dma_h(i))
    g2.c_setup(e)
    e('s_waitcnt vmcnt(0)')
    st(9)
    e('s_barrier')
    e.extend(g2.c_reads(0)); e('s_waitcnt lgkmcnt(0)')
    st(4)
    if stamps: e('v_mov_b32 v156, 0'); e('v_mov_b32 v157, 0')
    XD = opt.get('xf_delay', 5)
    PFB = {int(k): v for k, v in opt.get('pfb', {0: 1, 5: 2, 13: 3, 19: 4}).items()}
    for i in range(g2.NST):
        e('s_barrier')
        if stamps and opt.get('g2ticks', 1): tick(e, i, 157)
        extra = []
        if i in PFB: g2.pf_batch(e, PFB[i], PFB[i] & 3)
        if i == g2.NB: st(40); g2.c_send_setup(e)
        if g2.NB <= i < g2.NB + 2: extra = g2.c_send_stores(i - g2.NB)
        if i == g2.NB + XD: g2.c_send_flag(e, NON)
        if i == g2.NST - 2: g2.c_epi_pre(e)
        rd = g2.c_reads(i+1) if i+1 < g2.NST else []
        mf = g2.c_mfmas(i)
        if extra:
            body = []; k = 0; nm = 0
            for ins in interleave(mf, rd):
                body.append(ins)
                if ins.startswith('v_mfma'):
                    nm += 1
                    if nm % 4 == 2 and k < len(extra): body.extend(extra[k]); k += 1
            for g_ in extra[k:]: body.extend(g_)
            e.extend(body)
        else: e.extend(interleave(mf, rd, per=opt.get('g2per', 1)))
        e('s_waitcnt lgkmcnt(0)')
    e('s_barrier')
    st(5)
    g2.c_epi(e)
    e('s_barrier')
    g2.final_store(e)
    if stamps:
        e('s_waitcnt vmcnt(0)'); st(6); tick_dump(e); tick_dump(e, 157, 1)
    e(f's_branch {END}')

    e.label(LAB_L)
    vq = VQ()
    e('v_mov_b32 v2, 0'); e(f's_mov_b32 s12, {WS_FL + FL_EP}')
    e(f'buffer_load_dword v132, v2, {WS}, s12 offen sc1'); vq.issue('tag')
    if opt.get('tlb', 1):
        STEP = opt.get('tlb_step', 1 << 20)
        regs = [(P_WS, 0x10000000, WS_BASE, 0x3000000), (P_W2, 3584*1024*2, 0, 3584*1024*2), (P_W1, 1024*3584*2, 0, 1024*3584*2), (P_K, 1 << 22, 0, 1 << 22),
                (P_V, 1 << 22, 0, 1 << 22), (P_SSM, 1 << 22, 0, 1 << 22), (P_OUT, 1 << 22, 0, 1 << 22), (P_X, 1 << 22, 0, 1 << 22),
                (P_B1, 7168, 0, 4), (P_B2, 2048, 0, 4), (P_D, 2048, 0, 4), (P_SK, 8192, 0, 4)]
        labx = e.newlabel('L_tlbx')
        e(f's_cmp_eq_u32 s{S_W4}, 1'); e(f's_cbranch_scc0 {labx}')
        e('s_lshr_b32 s13, s2, 3')
        for r, (ptr, tot, off, span) in enumerate(regs):
            lab = e.newlabel('L_tlb')
            e(f's_cmp_eq_u32 s13, {r}'); e(f's_cbranch_scc0 {lab}')
            mk_srd(e, SRD_D, ptr, tot)
            n = max(1, min(64, (span + STEP - 1)//STEP))
            e(f's_mov_b32 s10, {STEP}'); e('v_mul_lo_u32 v4, s10, v1'); e(f's_mov_b32 s11, {off}')
            e('s_mov_b64 s[98:99], exec'); e(f's_bfm_b64 exec, {n}, 0') if n < 64 else e('s_mov_b64 exec, -1')
            e(f'buffer_load_dword v131, v4, {ssrd(SRD_D)}, s11 offen')
            e('s_mov_b64 exec, s[98:99]')
            e.label(lab)
        e.label(labx)
    prep.pre_pf(e)
    emit_prog(e, vq, lambda p: prep.pf_w1(p, 3, 5))
    prep.pre_rest(e)
    emit_prog(e, vq, prep.stats_loads)
    prep.pre_cs(e)
    e('s_barrier')
    e('s_barrier')
    st(1)
    def wave0(body):
        lab = e.newlabel('L_w0')
        e(f's_cmp_eq_u32 s{S_W4}, 0'); e(f's_cbranch_scc0 {lab}'); body(); e.label(lab)
    sl = prep.Slicer(prep.program(opt))
    def uf_publish():
        vq.wait(e, 'kst')
        e(f's_lshl_b32 s10, s{prep.S_DT}, 4'); e(f's_add_u32 s10, s10, s{prep.S_ST}'); e('s_lshl_b32 s10, s10, 2'); e(f's_add_u32 s10, s10, s{S_W4}')
        e('s_lshl_b32 s10, s10, 2'); e(f's_add_u32 s10, s10, {WS_FL + FL_UF}')
        flag_store(e, 's10', va=2); vq.issue('uf')
    for i in range(16):
        if i == 0:
            vq.wait(e, 'tag')
            def body():
                e('v_add_u32 v3, 1, v132')
                e(f'v_mov_b32 v2, {LDS_NONCE}'); e('ds_write_b32 v2, v3'); e('s_waitcnt lgkmcnt(0)')
            wave0(body)
        if i == 1:
            get_nonce()
            e('s_lshl_b32 s10, s2, 2'); e(f's_add_u32 s10, s10, s{S_W4}'); e('s_lshl_b32 s10, s10, 2'); e(f's_add_u32 s59, s10, {WS_FL + FL_ZF}')
        if i == pub0:
            def body():
                e(f's_lshl_b32 s10, s{S_MT1}, 4'); e(f's_add_u32 s10, s10, s{S_NT1}'); e('s_lshl_b32 s10, s10, 2'); e(f's_add_u32 s10, s10, {WS_FL + FL_YF}')
                flag_store(e, 's10', va=2)
            wave0(body)
        if i == pub1:
            def body():
                e(f's_and_b32 s11, s{prep.S_XCD}, 1')
                e('s_mul_i32 s13, s11, 28'); e(f's_add_u32 s13, s13, s{prep.S_J}')
                e('s_lshl_b32 s11, s11, 2'); e(f's_add_u32 s11, s11, s{prep.S_J}'); e('s_add_u32 s11, s11, 28')
                e(f's_cmp_lt_u32 s{prep.S_J}, 28'); e('s_cselect_b32 s11, s13, s11')
                e(f's_lshr_b32 s10, s{prep.S_XCD}, 1'); e('s_lshl_b32 s10, s10, 6'); e('s_add_u32 s10, s10, s11')
                e('s_lshl_b32 s10, s10, 2'); e(f's_add_u32 s10, s10, {WS_FL + FL_CF}')
                flag_store(e, 's10', va=2)
            wave0(body)
        sl.emit(e, vq, BUD, i)
        if W2P <= i < W2P + 4:
            emit_prog(e, vq, lambda p: prep.pf_lin(p, P_W2, 3584*1024*2, 56*(i - W2P), 56, 224))
        if i == opt.get('at_ssm', 13):
            emit_prog(e, vq, lambda p: prep.pf_lin(p, P_SSM, 1024*2048*2, 0, 128, 128))
        if i == 13:
            e('v_and_b32 v41, 15, v1'); e('v_lshlrev_b32 v41, 2, v41'); e(f's_lshl_b32 s12, s{S_MT1}, 6'); e(f's_add_u32 s12, s12, {WS_FL + FL_YF}')
            e(f'buffer_load_dword v40, v41, {WS}, s12 offen sc1')
            e('v_lshlrev_b32 v43, 2, v1'); e(f's_lshr_b32 s13, s{S_NT1}, 2'); e('s_lshl_b32 s13, s13, 8'); e(f's_add_u32 s13, s13, {WS_FL + FL_CF}')
            e(f'buffer_load_dword v42, v43, {WS}, s13 offen sc1')
            vq.issue('smp', 2)
        if i == 14:
            vq.wait(e, 'smp')
            check_or_poll(e, SRD_WS, 41, 's12', NON, 40)
            check_or_poll(e, SRD_WS, 43, 's13', NON, 42)
            prep.cs_loads(e, vq)
        if i == 15:
            e('v_lshlrev_b32 v10, 2, v1'); e('s_lshr_b32 s12, s2, 4'); e('s_lshl_b32 s12, s12, 8'); e(f's_add_u32 s12, s12, {WS_FL + FL_UF}')
            e(f'buffer_load_dword v12, v10, {WS}, s12 offen sc1'); vq.issue('smp2')
            vq.wait(e, 'csl'); prep.cs_finish(e)
            conv.base(e)
        if i == pub0 - 1: vq.wait(e, 'pst') if sl.marks.get('pf1') is None else None
        if i == pub1 - 1: vq.wait(e, 'pst')
        if i == pub2: uf_publish()
        st(16 + i)
        e('s_barrier')
    assert sl.done()
    st(2)
    if pub2 >= 16: uf_publish()
    vq.wait_all(e)
    check_or_poll(e, SRD_WS, 10, 's12', NON, 12)
    if opt.get('x_noconvdma'):
        t_ = Em(); conv.setup(t_, vq); e.extend([l for l in t_.L if not l.endswith(' lds')])
    else: conv.setup(e, vq)
    st(10)
    conv.odd_copies(e, vq)
    e('s_barrier')
    mk_srd(e, SRD_D, P_W2, 3584*1024*2); g2.pf_setup(e); g2.pf_batch(e, 0, opt.get('pf0w', 0), SRD_D)
    conv.compute(e, vq, st)
    vq.wait_all(e)
    flag_store(e, 's59', va=2); vq.issue('zf')
    st(3)
    g2.l_setup(e)
    e('s_barrier')
    for i in range(2, g2.NS): e.extend(g2.l_dma_w(i)); e.extend(g2.l_dma_h(i)); vq.issue(f'g{i}', 4 + g2.nw(i))
    st(4)
    if stamps: e('v_mov_b32 v156, 0'); e('v_mov_b32 v157, 0')
    e('s_barrier')
    RS = g2.NST - opt.get('rs', 5)
    for i in range(g2.NST):
        if i == RS: g2.l_recv_sample(e); vq.issue('smp4')
        if i == RS + 1:
            e('v_lshlrev_b32 v10, 2, v1'); e(f's_lshl_b32 s12, s{S_NT2}, 8'); e(f's_add_u32 s12, s12, {WS_FL + FL_ZF}')
            e(f'buffer_load_dword v11, v10, {WS}, s12 offen sc1'); vq.issue('smp3')
        if i + g2.NS < g2.NST:
            e.extend(g2.l_dma_w(i+g2.NS)); e.extend(g2.l_dma_h(i+g2.NS)); vq.issue(f'g{i+g2.NS}', 4 + g2.nw(i+g2.NS))
        if i == RS + 1:
            vq.wait(e, 'smp4'); g2.l_recv(e, NON); vq.issue('xp', 8)
        if i == max(RS + 2, g2.NST - 3):
            vq.wait(e, 'smp3')
            check_or_poll(e, SRD_WS, 10, 's12', NON, 11)
            g2.l_epi_loads(e); vq.issue('epi', 8)
        if i + 2 < g2.NST: vq.wait(e, f'g{i+2}')
        if i == g2.NST - 1: vq.wait_all(e)
        if stamps: tick(e, i, 157)
        e('s_barrier')
    st(5)
    lab = e.newlabel('L_ep')
    e(f's_cmp_eq_u32 s{S_WAVE}, 4'); e(f's_cbranch_scc0 {lab}'); e('s_cmp_eq_u32 s2, 0'); e(f's_cbranch_scc0 {lab}')
    e(f's_mov_b32 s10, {WS_FL + FL_EP}'); flag_store(e, 's10', va=2)
    e.label(lab)
    e('s_barrier')
    g2.final_store(e)
    if stamps:
        e('s_waitcnt vmcnt(0)'); st(6); tick_dump(e); tick_dump(e, 157, 1)
    e.label(END)
    return kernel(name, e.text(), 256, 160)

def header():
    return open('ref_header.txt').read()

def full(stamps=False, opt=None):
    return header() + '; @launch grid=(256,1,1) block=(512,1,1) lds=163840\n' + HDR + gen(stamps=stamps, opt=opt)

NAMES_C = {0:'start',1:'main0',2:'main_end',7:'gelu',3:'h_ack',8:'hpoll',9:'pre3',4:'g2_start',40:'send',5:'g2_end',6:'end'}
NAMES_L = {0:'start',1:'B0',2:'main_end',10:'cv_iss',7:'cv_data',8:'cv_mfma',9:'z_iss',3:'z_ack',4:'g2',5:'g2_end',6:'end'}

if __name__ == '__main__':
    import json
    out = sys.argv[1] if len(sys.argv) > 1 else 'fused.s'
    opt = json.loads(sys.argv[2]) if len(sys.argv) > 2 else {}
    opt['verbose'] = True
    t = full(opt=opt)
    open(out, 'w').write(t)
    print(len(t), 'bytes', t.count('\n'), 'lines')
```

```python
from fz_common import *
NB, NO = 22, 12
NST = NB + NO; NS = 4
SLOT = 32768
ACCO, ACCX = 16, 48
def acc(which, db, sb): return (ACCO if which == 0 else ACCX) + (db*4 + sb)*4
def frag(st, kk, idx):
    if st == 0: return ('a', kk*32 + idx*4)
    return ('a', 64 + idx*4) if kk == 0 else ('v', 80 + idx*4)
def rg(t, n, o=0): return f'{t[0]}[{t[1]+o}:{t[1]+o+n-1}]'
XT = 2*SLOT; ZT = 3*SLOT
S_SIDE, S_T = 62, 63

def map_tiles(e):
    e(f's_and_b32 s{S_MT2}, s10, 3'); e(f's_lshl_b32 s{S_MT2}, s{S_MT2}, 2'); e('s_and_b32 s12, s11, 3'); e(f's_add_u32 s{S_MT2}, s{S_MT2}, s12')
    e('s_lshr_b32 s12, s11, 2'); e(f's_lshl_b32 s{S_NT2}, s12, 1'); e('s_lshr_b32 s12, s10, 2'); e(f's_add_u32 s{S_NT2}, s{S_NT2}, s12')

def c_setup(e):
    e(f's_and_b32 s44, s{S_W4}, 1'); e(f's_lshr_b32 s45, s{S_W4}, 1')
    e('v_and_b32 v8, 15, v1'); e('v_lshrrev_b32 v9, 4, v1')
    e('s_lshl_b32 s10, s44, 13'); e('v_lshlrev_b32 v2, 4, v1'); e('v_add_u32 v2, s10, v2')
    e('v_lshrrev_b32 v10, 2, v8'); e('v_lshlrev_b32 v11, 2, v9'); e('v_add_u32 v10, v10, v11')
    e('v_lshrrev_b32 v11, 1, v10'); e('v_and_b32 v11, 3, v11')
    e('v_lshlrev_b32 v10, 7, v10')
    e('v_and_b32 v12, 3, v8'); e('v_lshlrev_b32 v12, 3, v12'); e('v_add_u32 v10, v10, v12')
    e('v_add_u32 v10, 16384, v10')
    e('s_lshl_b32 s10, s45, 1')
    for db in range(2):
        e(f's_add_u32 s11, s10, {db}')
        e('v_xor_b32 v12, s11, v11'); e('v_lshlrev_b32 v12, 5, v12')
        e(f'v_add_u32 v{3+db}, v10, v12')
    for hb in range(NS//2):
        for i in range(3): e(f'v_add_u32 v{128+hb*3+i}, {hb*2*SLOT}, v{2+i}')

def c_reads(i):
    st = i & 1; sl = i % NS; hb = sl // 2; off = (sl % 2)*SLOT; both = i < NB
    out = []
    for kk in range(2):
        for w in range(2 if both else 1):
            for db in range(2):
                f = frag(st, kk, 4 + 2*w + db)
                for h in range(2):
                    out.append(f'ds_read_b64_tr_b16 {rg(f, 2, 2*h)}, v{129+hb*3+db} offset:{off + w*8192 + kk*4096 + h*2048}')
        for sb in range(4):
            out.append(f'ds_read_b128 {rg(frag(st, kk, sb), 4)}, v{128+hb*3} offset:{off+sb*2048+kk*1024}')
    return out
def c_mfmas(i):
    st = i & 1; out = []; both = i < NB
    for kk in range(2):
        for w in range(2 if both else 1):
            for db in range(2):
                for sb in range(4):
                    a = acc(w, db, sb)
                    c = '0' if (i == 0 and kk == 0) else f'v[{a}:{a+3}]'
                    out.append(f'v_mfma_f32_16x16x32_bf16 v[{a}:{a+3}], {rg(frag(st, kk, 4+2*w+db), 4)}, {rg(frag(st, kk, sb), 4)}, {c}')
    return out

def xp_addr(e, dst, other):
    e(f's_lshl_b32 {dst}, s{S_MT2}, 4'); e(f's_xor_b32 s11, s{S_NT2}, {other}'); e(f's_add_u32 {dst}, {dst}, s11')
    e(f's_lshl_b32 {dst}, {dst}, 2'); e(f's_add_u32 {dst}, {dst}, s{S_W4}')
def c_send_setup(e):
    xp_addr(e, 's46', 0); e('s_lshl_b32 s47, s46, 2'); e(f's_add_u32 s47, s47, {WS_FL + FL_XF}')
    e('s_lshl_b32 s46, s46, 13'); e(f's_add_u32 s46, s46, {WS_XP}'); e('s_add_u32 s48, s46, 4096')
    e('v_lshlrev_b32 v140, 4, v1'); e('s_nop 4')
def c_send_stores(half):
    WS = ssrd(SRD_WS)
    return [[f'buffer_store_dwordx4 v[{ACCX+4*q}:{ACCX+4*q+3}], v140, {WS}, s{46 if q < 4 else 48} offen offset:{1024*(q % 4)} sc1'] for q in range(4*half, 4*half+4)]
def c_send_flag(e, nonce):
    e('s_waitcnt vmcnt(0)')
    e('v_mov_b32 v142, 0'); e(f'v_mov_b32 v143, {nonce}')
    e(f'buffer_store_dword v143, v142, {ssrd(SRD_WS)}, s47 offen sc1')
def l_recv_sample(e):
    xp_addr(e, 's59', 1); e('s_lshl_b32 s60, s59, 2'); e(f's_add_u32 s60, s60, {WS_FL + FL_XF}')
    e('s_lshl_b32 s59, s59, 13'); e(f's_add_u32 s59, s59, {WS_XP}')
    e('v_mov_b32 v20, 0')
    e(f'buffer_load_dword v21, v20, {ssrd(SRD_WS)}, s60 offen sc1')
def l_recv(e, nonce):
    check_or_poll(e, SRD_WS, 20, 's60', nonce, 21)
    e(f's_mul_i32 s10, s{S_W4}, {SLOT}'); e(f's_add_u32 s10, s10, {16384 + 8192}'); e('v_lshlrev_b32 v22, 4, v1')
    for hf in range(2):
        e(f's_add_u32 m0, s10, {4096*hf}'); e(f's_add_u32 s11, s59, {4096*hf}')
        for q in range(4): e(f'buffer_load_dwordx4 v22, {ssrd(SRD_WS)}, s11 offen offset:{1024*q} sc1 lds')

def c_epi_pre(e):
    WS = ssrd(SRD_WS)
    mk_srd(e, SRD_A, P_B2, 1024*2)
    e(f's_lshl_b32 s10, s{S_MT2}, 7'); e('s_lshl_b32 s11, s44, 6'); e('s_add_u32 s10, s10, s11')
    e('v_add_u32 v112, s10, v8'); e('v_lshlrev_b32 v112, 4, v112'); e(f'v_add_u32 v112, {WS_ST}, v112')
    for sb in range(4):
        e(f'buffer_load_dwordx2 v[{144+2*sb}:{145+2*sb}], v112, {WS}, 0 offen offset:{sb*256} sc1')
    e(f's_lshl_b32 s10, s{S_NT2}, 6'); e('s_lshl_b32 s11, s45, 5'); e('s_add_u32 s10, s10, s11')
    e('v_lshlrev_b32 v113, 2, v9'); e('v_add_u32 v113, s10, v113'); e('v_lshlrev_b32 v113, 1, v113')
    for db in range(2):
        e(f'buffer_load_dwordx2 v[{152+2*db}:{153+2*db}], v113, {ssrd(SRD_A)}, 0 offen offset:{db*32}')
    e('s_lshl_b32 s10, s44, 13')
    e('v_lshlrev_b32 v114, 7, v8'); e('v_add_u32 v114, s10, v114')
    e('v_and_b32 v115, 1, v9'); e('v_lshlrev_b32 v115, 3, v115'); e('v_add_u32 v114, v114, v115')
    e('v_lshrrev_b32 v115, 1, v9'); e('v_and_b32 v116, 7, v8')
    e('s_lshl_b32 s10, s45, 2')
    for db in range(2):
        e(f's_add_u32 s11, s10, {2*db}')
        e('v_add_u32 v117, s11, v115'); e('v_xor_b32 v117, v117, v116'); e('v_lshlrev_b32 v117, 4, v117')
        e(f'v_add_u32 v{118+db}, v114, v117'); e(f'v_add_u32 v{118+db}, {XT}, v{118+db}')
    e('v_lshrrev_b32 v114, 2, v8'); e('v_lshlrev_b32 v115, 2, v9'); e('v_add_u32 v114, v114, v115')
    e('v_and_b32 v115, 7, v114')
    e('s_lshl_b32 s10, s45, 5'); e('v_add_u32 v114, s10, v114'); e('v_lshlrev_b32 v114, 8, v114')
    e('v_and_b32 v116, 3, v8'); e('v_lshlrev_b32 v116, 3, v116'); e('v_add_u32 v114, v114, v116')
    e(f'v_add_u32 v114, {ZT}, v114')
    e('s_lshl_b32 s10, s44, 2')
    for sb in range(4):
        e(f's_add_u32 s11, s10, {sb}')
        e('v_xor_b32 v117, s11, v115'); e('v_lshlrev_b32 v117, 5, v117')
        e(f'v_add_u32 v{120+sb}, v114, v117')

def c_epi(e):
    e(f's_mul_i32 s10, s{S_W4}, {SLOT}'); e(f's_add_u32 s10, s10, {16384 + 8192}'); e('v_lshlrev_b32 v98, 4, v1'); e('v_add_u32 v98, s10, v98')
    for q in range(8): e(f'ds_read_b128 v[{ACCX+4*q}:{ACCX+4*q+3}], v98 offset:{1024*q}')
    e('s_waitcnt vmcnt(0)')
    for q in range(8):
        e(f's_waitcnt lgkmcnt({7-q})')
        for r in range(4): e(f'v_add_f32 v{ACCO+4*q+r}, v{ACCO+4*q+r}, v{ACCX+4*q+r}')
    blocks = [(db, sb) for db in range(2) for sb in range(4)]
    def rd(i):
        db, sb = blocks[i]; r = 80 + 4*(i & 1)
        e(f'ds_read_b64 v[{r}:{r+1}], v{118+db} offset:{sb*2048}')
        e(f'ds_read_b64_tr_b16 v[{r+2}:{r+3}], v{120+sb} offset:{db*4096}')
    rd(0)
    for i, (db, sb) in enumerate(blocks):
        if sb == 0:
            e(f'v_lshlrev_b32 v124, 16, v{152+2*db}'); e(f'v_and_b32 v125, 0xffff0000, v{152+2*db}')
            e(f'v_lshlrev_b32 v126, 16, v{153+2*db}'); e(f'v_and_b32 v127, 0xffff0000, v{153+2*db}')
        a = acc(0, db, sb); r0 = 80 + 4*(i & 1)
        if i + 1 < len(blocks):
            rd(i+1); e('s_waitcnt lgkmcnt(%d)' % (2 if i == 0 else 3))
        else: e('s_waitcnt lgkmcnt(1)')
        e(f'v_lshlrev_b32 v88, 16, v{r0}'); e(f'v_and_b32 v89, 0xffff0000, v{r0}')
        e(f'v_lshlrev_b32 v90, 16, v{r0+1}'); e(f'v_and_b32 v91, 0xffff0000, v{r0+1}')
        e(f'v_lshlrev_b32 v92, 16, v{r0+2}'); e(f'v_and_b32 v93, 0xffff0000, v{r0+2}')
        e(f'v_lshlrev_b32 v94, 16, v{r0+3}'); e(f'v_and_b32 v95, 0xffff0000, v{r0+3}')
        m_, r1 = 144+2*sb, 145+2*sb
        for r in range(4): e(f'v_add_f32 v{a+r}, v{a+r}, v{124+r}')
        for r in range(4): e(f'v_add_f32 v{a+r}, v{a+r}, v{88+r}')
        for r in range(4): e(f'v_sub_f32 v{88+r}, v{88+r}, v{m_}')
        for r in range(4): e(f'v_mul_f32 v{88+r}, v{88+r}, v{r1}')
        for r in range(4): e(f'v_fmac_f32 v{a+r}, v{88+r}, v{92+r}')
        e(f'v_cvt_pk_bf16_f32 v96, v{a}, v{a+1}'); e(f'v_cvt_pk_bf16_f32 v97, v{a+2}, v{a+3}')
        e(f'ds_write_b64 v{118+db}, v[96:97] offset:{sb*2048}')
    e('s_waitcnt lgkmcnt(0)')

def final_store(e):
    mk_srd(e, SRD_B, P_OUT, 2048*1024*2)
    e('v_lshrrev_b32 v8, 3, v1'); e('v_and_b32 v9, 7, v1')
    e(f's_lshl_b32 s10, s{S_WAVE}, 4'); e('v_add_u32 v10, s10, v8')
    e('v_lshlrev_b32 v11, 7, v10'); e('v_xor_b32 v12, v9, v8'); e('v_lshlrev_b32 v12, 4, v12'); e('v_add_u32 v11, v11, v12')
    e(f'v_add_u32 v11, {XT}, v11')
    e(f's_lshl_b32 s10, s{S_MT2}, 7'); e('v_add_u32 v10, s10, v10'); e('v_lshlrev_b32 v10, 11, v10')
    e('v_lshlrev_b32 v9, 4, v9'); e('v_add_u32 v10, v10, v9')
    e(f's_lshl_b32 s10, s{S_NT2}, 7')
    for q in range(2): e(f'ds_read_b128 v[{16+4*q}:{19+4*q}], v11 offset:{q*1024}')
    for q in range(2):
        e(f's_waitcnt lgkmcnt({1-q})')
        e(f's_add_u32 s11, s10, {q*8*2048}')
        e(f'buffer_store_dwordx4 v[{16+4*q}:{19+4*q}], v10, {ssrd(SRD_B)}, s11 offen')

def l_setup(e):
    mk_srd(e, SRD_A, P_W2, 3584*1024*2)
    e('v_lshlrev_b32 v2, 4, v1'); e(f'v_add_u32 v3, {112*1024-2048}, v2')
    e(f's_and_b32 s55, s{S_NT2}, 1'); e(f's_mul_i32 s55, s55, {NB+NO}')
    e(f's_lshl_b32 s50, s{S_MT2}, 3'); e(f's_lshl_b32 s10, s{S_W4}, 1'); e('s_add_u32 s50, s50, s10'); e('s_mul_i32 s50, s50, %d' % (112*1024))
    if WS_H: e(f's_add_u32 s50, s50, {WS_H}')
    e(f's_lshl_b32 s51, s{S_W4}, 12')
    e('v_lshrrev_b32 v6, 3, v1'); e('v_and_b32 v7, 7, v1')
    e('v_lshrrev_b32 v8, 1, v7'); e('v_lshrrev_b32 v9, 1, v6'); e('v_xor_b32 v8, v8, v9'); e('v_lshlrev_b32 v8, 1, v8')
    e('v_and_b32 v9, 1, v7'); e('v_or_b32 v8, v8, v9'); e('v_lshlrev_b32 v8, 4, v8')
    e('v_lshlrev_b32 v6, 11, v6'); e('v_add_u32 v4, v6, v8'); e(f'v_add_u32 v5, {8*2048-1024}, v4')
    e(f's_lshl_b32 s52, s{S_W4}, 15'); e(f's_lshl_b32 s10, s{S_NT2}, 7'); e('s_add_u32 s54, s52, s10')
    e('s_xor_b32 s10, s10, 128'); e('s_add_u32 s10, s52, s10')
    e('s_mov_b32 s52, s54'); e('s_mov_b32 s54, s10')
    e(f's_lshl_b32 s53, s{S_W4}, 11'); e('s_add_u32 s53, s53, 16384')
    e('s_lshl_b32 s10, s55, 11'); e('s_add_u32 s56, s50, s10')
    e('s_lshl_b32 s10, s55, 17'); e('s_add_u32 s57, s52, s10'); e('s_add_u32 s58, s54, s10')
def l_dma_w(i):
    sl = (i % NS)*SLOT; both = i < NB
    out = [f's_add_u32 m0, s53, {sl}', f's_add_u32 s10, s{57 if both else 52}, {i*64*2048}']
    for q in range(2): out.append(f'buffer_load_dwordx4 v{4+q}, {ssrd(SRD_A)}, s10 offen offset:{1024*q} lds')
    if both:
        out += [f's_add_u32 m0, s53, {sl + 8192}', f's_add_u32 s10, s58, {i*64*2048}']
        for q in range(2): out.append(f'buffer_load_dwordx4 v{4+q}, {ssrd(SRD_A)}, s10 offen offset:{1024*q} lds')
    return out
def l_dma_h(i):
    sl = (i % NS)*SLOT; both = i < NB
    out = [f's_add_u32 m0, s51, {sl}', f's_add_u32 s10, s{56 if both else 50}, {i*2048}']
    for q in range(4): out.append(f'buffer_load_dwordx4 v{2+(q>>1)}, {ssrd(SRD_WS)}, s10 offen offset:{1024*q} sc1 lds')
    return out
def nw(i): return 4 if i < NB else 2
def l_epi_loads(e):
    e('v_lshrrev_b32 v10, 3, v1'); e('v_and_b32 v11, 7, v1'); e('v_xor_b32 v11, v11, v10'); e('v_lshlrev_b32 v11, 4, v11')
    e(f's_lshl_b32 s10, s{S_W4}, 5'); e('v_add_u32 v10, s10, v10'); e('v_lshlrev_b32 v10, 11, v10'); e('v_add_u32 v12, v10, v11')
    e(f's_lshl_b32 s12, s{S_MT2}, 18'); e(f's_lshl_b32 s11, s{S_NT2}, 7'); e('s_add_u32 s12, s12, s11')
    e(f's_lshl_b32 s11, s{S_W4}, 12'); e(f's_add_u32 m0, s11, {XT}')
    for q in range(4):
        e(f'v_add_u32 v13, {q*(16384-1024)}, v12')
        e(f'buffer_load_dwordx4 v13, {ssrd(SRD_X)}, s12 offen offset:{1024*q} lds')
    e('v_lshrrev_b32 v10, 4, v1'); e('v_and_b32 v11, 15, v1'); e('v_lshrrev_b32 v14, 1, v11'); e('v_and_b32 v11, 1, v11')
    e(f's_lshl_b32 s12, s{S_NT2}, 6'); e(f's_lshl_b32 s11, s{S_W4}, 4'); e('s_add_u32 s12, s12, s11'); e('s_lshl_b32 s12, s12, 12')
    e(f's_lshl_b32 s11, s{S_MT2}, 8'); e('s_add_u32 s12, s12, s11'); e(f's_add_u32 s12, s12, {WS_ZT}')
    e(f's_lshl_b32 s11, s{S_W4}, 12'); e(f's_add_u32 m0, s11, {ZT}')
    for q in range(4):
        e(f'v_add_u32 v15, {4*q}, v10'); e('v_and_b32 v16, 7, v15'); e('v_xor_b32 v16, v16, v14'); e('v_lshlrev_b32 v16, 1, v16')
        e('v_or_b32 v16, v16, v11'); e('v_lshlrev_b32 v16, 4, v16'); e('v_lshlrev_b32 v15, 12, v15'); e('v_add_u32 v15, v15, v16')
        e(f'v_subrev_u32 v15, {1024*q}, v15')
        e(f'buffer_load_dwordx4 v15, {ssrd(SRD_WS)}, s12 offen offset:{1024*q} sc1 lds')

def pf_setup(e, sb='s49', vb=146):
    e(f's_and_b32 s10, s{S_WG}, 3'); e('s_lshl_b32 s10, s10, 5'); e(f's_lshr_b32 s11, s{S_WG}, 3'); e('s_add_u32 s10, s10, s11')
    e(f's_lshl_b32 {sb}, s10, 10')
    e(f's_and_b32 s10, s{S_NT2}, 1'); e(f's_mul_i32 s10, s10, {(NB+NO)*64*2048}'); e(f's_add_u32 {sb}, {sb}, s10')
    e(f'v_lshrrev_b32 v{vb}, 3, v1'); e(f'v_lshlrev_b32 v{vb}, 17, v{vb}'); e(f'v_and_b32 v{vb+1}, 7, v1'); e(f'v_lshlrev_b32 v{vb+1}, 7, v{vb+1}'); e(f'v_add_u32 v{vb}, v{vb}, v{vb+1}')
def pf_batch(e, b, wave, srd_reg=SRD_A, sb='s49', vb=146):
    lab = e.newlabel('L_w2pf')
    e(f's_cmp_eq_u32 s{S_W4}, {wave}'); e(f's_cbranch_scc0 {lab}')
    e(f's_add_u32 s10, {sb}, {b*8*64*2048}')
    e(f'buffer_load_dword v{vb+1}, v{vb}, {ssrd(srd_reg)}, s10 offen')
    e.label(lab)
```

```python
from fz_common import *
from fz_g1 import TB, CSB

class Prog:
    def __init__(self): self.a = []
    def __call__(self, s):
        for line in s.split('\n'):
            line = line.strip()
            if line: self.a.append([line])
    def atom(self, lines): self.a.append(list(lines))
    def vm(self, tag, n=1): self.a.append(('vm', tag, n))
    def wait(self, tags): self.a.append(('wait', tags))
    def bar(self): self.a.append(('bar',))
    def at(self, n): self.a.append(('at', n))
    def mark(self, name): self.a.append(('mark', name))

NT = ' nt'
T0, T1, T2 = 's61', 's62', 's63'
WS = ssrd(SRD_WS)
S_ROW0, S_ST, S_DT, S_CSST, S_CSLD, S_XCD, S_J, S_URA = 50, 51, 52, 54, 55, 53, 58, 60
S_CSM = 48
V_TW, V_TR, V_UR, V_CSO, V_XPF, V_WPF, V_LIN, V_LAM, V_CSL, V_ROW, V_C8, V_RG, V_SEL = 133, 134, 136, 138, 140, 141, 142, 143, 144, 145, 146, 147, 148
V_JUNK = 139

def wave_sum_dpp(regs):
    o = []
    for s in ['row_shr:1', 'row_shr:2', 'row_shr:4', 'row_shr:8']:
        for r in regs: o.append(f'v_add_f32_dpp v{r}, v{r}, v{r} {s} row_mask:0xf bank_mask:0xf bound_ctrl:1')
    for r in regs: o.append(f'v_add_f32_dpp v{r}, v{r}, v{r} row_bcast:15 row_mask:0xa bank_mask:0xf')
    for r in regs: o.append(f'v_add_f32_dpp v{r}, v{r}, v{r} row_bcast:31 row_mask:0xc bank_mask:0xf')
    o.append('s_nop 1')
    return o

def pre_pf(e):
    e(f's_and_b32 s{S_XCD}, s{S_WG}, 7'); e(f's_lshr_b32 s{S_J}, s{S_WG}, 3')
    e(f's_lshl_b32 {T0}, s{S_W4}, 6'); e(f'v_add_u32 v{V_LAM}, {T0}, v1')
    e(f's_and_b32 {T0}, s{S_XCD}, 1'); e(f's_lshl_b32 {T0}, {T0}, 10'); e(f's_lshl_b32 {T1}, s{S_J}, 5'); e(f's_add_u32 {T0}, {T0}, {T1}')
    e(f'v_and_b32 v48, 31, v{V_LAM}'); e(f'v_add_u32 v48, {T0}, v48'); e('v_lshlrev_b32 v48, 11, v48')
    e(f'v_lshrrev_b32 v49, 5, v{V_LAM}'); e('v_lshlrev_b32 v49, 7, v49'); e(f'v_add_u32 v{V_XPF}, v48, v49')
    e(f'v_mul_u32_u24 v48, 2341, v{V_LAM}'); e('v_lshrrev_b32 v48, 16, v48')
    e('v_mul_u32_u24 v49, 28, v48'); e(f'v_sub_u32 v49, v{V_LAM}, v49')
    e('v_cmp_lt_u32 vcc, 13, v49'); e('v_lshlrev_b32 v48, 6, v48'); e('s_nop 0')
    e('v_cndmask_b32 v50, 0, 1, vcc'); e('v_add_u32 v48, v48, v50'); e('v_mul_u32_u24 v50, 14, v50'); e('v_sub_u32 v49, v49, v50')
    e(f's_lshl_b32 {T0}, s{S_J}, 1'); e(f'v_add_u32 v48, {T0}, v48'); e('v_mul_u32_u24 v48, 7168, v48')
    e('v_lshlrev_b32 v49, 7, v49'); e('v_add_u32 v48, v48, v49')
    e(f's_lshr_b32 {T0}, s{S_XCD}, 1'); e(f's_mul_i32 {T0}, {T0}, 1792'); e(f'v_add_u32 v{V_WPF}, {T0}, v48')
    e(f'v_lshlrev_b32 v{V_LIN}, 7, v{V_LAM}')

def pre_rest(e):
    mk_srd(e, SRD_A, P_K, 2048*1024*2); mk_srd(e, SRD_B, P_V, 2048*1024*2); mk_srd(e, SRD_C, P_SK, 1024*4*2)
    e(f's_lshl_b32 {T0}, s{S_MT1}, 7'); e(f's_lshl_b32 {T1}, s{S_NT1}, 3'); e(f's_add_u32 {T0}, {T0}, {T1}'); e(f's_lshl_b32 {T1}, s{S_W4}, 1')
    e(f's_add_u32 s{S_ROW0}, {T0}, {T1}')
    e(f's_lshr_b32 s{S_ST}, s{S_WG}, 4'); e(f's_and_b32 s{S_DT}, s{S_WG}, 15')
    e(f'v_and_b32 v{V_C8}, 7, v1'); e(f'v_lshrrev_b32 v{V_RG}, 3, v1')
    e(f's_lshl_b32 {T0}, s{S_W4}, 3'); e(f'v_add_u32 v{V_RG}, {T0}, v{V_RG}')
    e(f'v_lshlrev_b32 v48, 2, v{V_RG}'); e(f's_lshl_b32 {T0}, s{S_ST}, 7'); e(f'v_add_u32 v48, {T0}, v48')
    e(f'v_lshlrev_b32 v49, 4, v{V_C8}'); e(f's_lshl_b32 {T0}, s{S_DT}, 7'); e(f'v_add_u32 v49, {T0}, v49')
    e('v_lshlrev_b32 v48, 11, v48'); e(f'v_add_u32 v{V_ROW}, v48, v49')
    e(f'v_sub_u32 v48, 31, v{V_RG}'); e(f'v_lshlrev_b32 v49, 1, v{V_C8}'); e('v_xor_b32 v48, v48, v49'); e('v_lshlrev_b32 v48, 3, v48')
    e(f'v_lshlrev_b32 v49, 10, v{V_C8}'); e('v_add_u32 v48, v48, v49'); e(f'v_add_u32 v{V_TW}, {TB}, v48')
    e('v_lshrrev_b32 v48, 4, v1'); e(f's_lshl_b32 {T0}, s{S_W4}, 3'); e(f'v_add_u32 v48, {T0}, v48'); e('v_and_b32 v49, 15, v1')
    for q in range(2):
        e(f'v_add_u32 v50, {4*q}, v48'); e('v_lshrrev_b32 v51, 2, v50')
        e('v_xor_b32 v52, v51, v49'); e('v_lshlrev_b32 v52, 4, v52'); e('v_lshlrev_b32 v53, 8, v50'); e('v_add_u32 v52, v52, v53')
        e(f'v_add_u32 v{V_TR+q}, {TB}, v52')
        e('v_lshlrev_b32 v51, 3, v51'); e('v_and_b32 v50, 3, v50'); e('v_add_u32 v51, v51, v50')
        e(f'v_mul_u32_u24 v51, {UR_PITCH}, v51'); e('v_lshlrev_b32 v53, 4, v49'); e(f'v_add_u32 v{V_UR+q}, v51, v53')
    e(f's_lshl_b32 {T0}, s{S_DT}, 6'); e(f's_mul_i32 {T0}, {T0}, {UR_PITCH}'); e(f's_add_u32 {T0}, {T0}, {WS_UR + 3840}')
    e(f's_lshl_b32 {T1}, s{S_ST}, 8'); e(f's_sub_u32 s{S_URA}, {T0}, {T1}')

def pre_cs(e):
    e(f's_cmp_ge_u32 s{S_J}, 14'); e(f's_cselect_b32 {T0}, 1, 0'); e(f's_cmp_ge_u32 s{S_J}, 28'); e(f's_cselect_b32 {T0}, 0, {T0}')
    e(f's_mul_i32 {T1}, {T0}, 14'); e(f's_sub_u32 {T1}, s{S_J}, {T1}'); e(f's_min_u32 {T1}, {T1}, 13')
    e(f's_lshr_b32 {T2}, s{S_XCD}, 1'); e(f's_mul_i32 {T2}, {T2}, 14'); e(f's_add_u32 {T1}, {T1}, {T2}')
    e(f's_and_b32 {T2}, s{S_XCD}, 1'); e(f's_lshl_b32 {T2}, {T2}, 1'); e(f's_add_u32 {T0}, {T0}, {T2}')
    e(f's_lshl_b32 {T0}, {T0}, 2'); e(f's_add_u32 {T0}, {T0}, s{S_W4}')
    e(f's_lshl_b32 s{S_CSLD}, {T0}, 6'); e(f's_mul_i32 s{S_CSLD}, s{S_CSLD}, 7168'); e(f's_lshl_b32 {T2}, {T1}, 7'); e(f's_add_u32 s{S_CSLD}, s{S_CSLD}, {T2}')
    e(f's_mul_i32 {T0}, {T0}, 3584'); e(f's_lshl_b32 {T2}, {T1}, 6'); e(f's_add_u32 {T0}, {T0}, {T2}'); e(f's_lshl_b32 {T0}, {T0}, 2')
    e(f's_add_u32 s{S_CSST}, {T0}, {WS_CS}')
    e('v_lshrrev_b32 v48, 4, v1'); e('v_lshlrev_b32 v48, 1, v48'); e('v_bfe_u32 v49, v1, 3, 1'); e('v_add_u32 v48, v48, v49')
    e('v_mul_u32_u24 v48, 7168, v48'); e('v_and_b32 v49, 7, v1'); e('v_lshlrev_b32 v49, 4, v49'); e(f'v_add_u32 v{V_CSL}, v48, v49')
    e('v_and_b32 v49, 7, v1'); e('v_lshlrev_b32 v49, 5, v49'); e('v_lshrrev_b32 v50, 4, v1'); e('v_lshlrev_b32 v48, 4, v50'); e('v_add_u32 v49, v49, v48')
    e(f's_cmp_lt_u32 s{S_J}, 28'); e(f's_cselect_b32 {T0}, 0, 0x20000000'); e(f'v_add_u32 v{V_CSO}, {T0}, v49')
    e('v_bfe_u32 v48, v1, 3, 1'); e('v_cmp_gt_u32 vcc, 2, v50'); e(f'v_cmp_eq_u32 s[{S_CSM}:{S_CSM+1}], 1, v48'); e('s_nop 1')
    e(f's_and_b64 s[{S_CSM}:{S_CSM+1}], vcc, s[{S_CSM}:{S_CSM+1}]')
    e('v_and_b32 v48, 15, v1'); e('v_and_b32 v49, 1, v48'); e('v_lshlrev_b32 v49, 4, v49'); e('v_mov_b32 v50, 0x3f80'); e('v_lshlrev_b32 v49, v49, v50')
    e('v_lshrrev_b32 v48, 1, v48')
    for q in range(4):
        e(f'v_cmp_eq_u32 vcc, {q}, v48'); e('s_nop 1'); e(f'v_cndmask_b32 v{V_SEL+q}, 0, v49, vcc')

def pf_x(p, a, b):
    p.atom([f'v_cmp_gt_u32 vcc, {32*(b-a)}, v{V_LAM}', 'v_mov_b32 v6, 0x7fffffff', f's_mov_b32 {T0}, {a*128}', f'v_cndmask_b32 v5, v6, v{V_XPF}, vcc',
            f'buffer_load_dword v{V_JUNK}, v5, {ssrd(SRD_X)}, {T0} offen'])
    p.vm('pf')
def pf_w1(p, a, b):
    p.atom([f'v_cmp_gt_u32 vcc, {28*(b-a)}, v{V_LAM}', 'v_mov_b32 v6, 0x7fffffff', f's_mov_b32 {T0}, {a*458752}', f'v_cndmask_b32 v5, v6, v{V_WPF}, vcc',
            f'buffer_load_dword v{V_JUNK}, v5, {ssrd(SRD_W1)}, {T0} offen'])
    p.vm('pf')
def pf_lin(p, ptr, tot, first, n, per, fl=''):
    p.atom([f's_mov_b32 s{SRD_D}, s{ptr}', f's_and_b32 s{SRD_D+1}, s{ptr+1}, 0xffff', f's_mov_b32 s{SRD_D+2}, {tot}', f's_mov_b32 s{SRD_D+3}, 0x20000',
            f'v_cmp_gt_u32 vcc, {n}, v{V_LAM}', 'v_mov_b32 v6, 0x7fffffff', f's_mul_i32 {T1}, s{S_WG}, {per*128}', f'v_cndmask_b32 v5, v6, v{V_LIN}, vcc',
            f's_add_u32 {T1}, {T1}, {first*128}', f'buffer_load_dword v{V_JUNK}, v5, {ssrd(SRD_D)}, {T1} offen{fl}'])
    p.vm('pf')

def stats_loads(p):
    p(f's_lshl_b32 {T0}, s{S_ROW0}, 11'); p('v_lshlrev_b32 v2, 4, v1')
    for rr in range(2):
        p(f'buffer_load_dwordx4 v[{8+8*rr}:{11+8*rr}], v2, {ssrd(SRD_X)}, {T0} offen offset:{2048*rr}'); p.vm('st')
        p(f'buffer_load_dwordx4 v[{12+8*rr}:{15+8*rr}], v2, {ssrd(SRD_X)}, {T0} offen offset:{2048*rr+1024}'); p.vm('st')

def cs_slab_loads(p, ts=range(8)):
    for t in ts:
        p(f's_add_u32 {T0}, s{S_CSLD}, {t*8*7168}')
        p(f'buffer_load_dwordx4 a[{4*t}:{4*t+3}], v{V_CSL}, {ssrd(SRD_W1)}, {T0} offen'); p.vm('cs')

def k_loads(p, rows):
    for i in rows:
        d = (i - 3)*2048
        p(f'v_add_u32 v7, {d}, v{V_ROW}' if d >= 0 else f'v_subrev_u32 v7, {-d}, v{V_ROW}')
        p(f'buffer_load_dwordx4 v[{72+4*i}:{75+4*i}], v7, {ssrd(SRD_A)}, 0 offen{NT}'); p.vm('kv')
def sk_loads(p):
    p(f'v_lshlrev_b32 v7, 6, v{V_C8}'); p(f's_lshl_b32 {T0}, s{S_DT}, 9'); p(f'v_add_u32 v7, {T0}, v7')
    for i in range(4):
        p(f'buffer_load_dwordx4 v[{116+4*i}:{119+4*i}], v7, {ssrd(SRD_C)}, 0 offen offset:{16*i}'); p.vm('kv')
def v_loads(p, rows):
    for i in rows:
        p(f'v_add_u32 v7, {i*2048}, v{V_ROW}')
        p(f'buffer_load_dwordx4 v[{100+4*i}:{103+4*i}], v7, {ssrd(SRD_B)}, 0 offen{NT}'); p.vm('kv')

def stats(p):
    p('v_mov_b32 v24, 0x3f803f80')
    for r in range(4): p(f'v_mov_b32 v{26+r}, 0')
    for d in range(8):
        for rr in range(2):
            p(f'v_dot2c_f32_bf16 v{26+rr}, v{8+8*rr+d}, v24')
            p(f'v_dot2c_f32_bf16 v{28+rr}, v{8+8*rr+d}, v{8+8*rr+d}')
    p('s_nop 3')
    p.atom(wave_sum_dpp([26, 27, 28, 29]))
    p.atom([f'v_readlane_b32 {T0}, v26, 63', f'v_readlane_b32 {T1}, v27, 63', 'v_mov_b32 v30, 0x3a800000', 's_nop 0',
            f'v_mul_f32 v26, {T0}, v30', f'v_mul_f32 v27, {T1}, v30',
            f'v_readlane_b32 {T0}, v28, 63', f'v_readlane_b32 {T1}, v29, 63', 'v_mov_b32 v31, 0x%x' % f2u(1e-5), 's_nop 0',
            f'v_mul_f32 v28, {T0}, v30', f'v_mul_f32 v29, {T1}, v30'])
    for rr in range(2):
        p(f'v_fma_f32 v{28+rr}, -v{26+rr}, v{26+rr}, v{28+rr}')
    for rr in range(2): p(f'v_max_f32 v{28+rr}, 0, v{28+rr}')
    a = []
    for rr in range(2): a.append(f'v_add_f32 v{32+rr}, v{28+rr}, v31')
    for rr in range(2): a.append(f'v_rsq_f32 v{32+rr}, v{32+rr}')
    for rr in range(2): a.append(f'v_mov_b32 v{36+4*rr}, v{26+rr}')
    for rr in range(2): a.append(f'v_mul_f32 v{34+rr}, v{32+rr}, v{32+rr}')
    for rr in range(2): a.append(f'v_fma_f32 v{34+rr}, v{34+rr}, v{28+rr}, v31')
    for rr in range(2): a.append(f'v_rsq_f32 v{34+rr}, v{34+rr}')
    for rr in range(2): a.append(f'v_mov_b32 v{37+4*rr}, v{32+rr}')
    for rr in range(2): a.append(f'v_mul_f32 v{38+4*rr}, v{32+rr}, v{34+rr}')
    for rr in range(2): a.append(f'v_mul_f32 v{39+4*rr}, v{38+4*rr}, v{26+rr}')
    p.atom(a)
    p.atom(['v_cmp_eq_u32 vcc, 1, v1', f'v_add_u32 v32, s{S_ROW0}, v1', 'v_lshlrev_b32 v32, 4, v32'] + [f'v_cndmask_b32 v{36+i}, v{36+i}, v{40+i}, vcc' for i in range(4)])
    p(f'v_add_u32 v32, {WS_ST}, v32')
    p.atom(['v_cmp_gt_u32 vcc, 2, v1', 's_and_saveexec_b64 s[98:99], vcc',
            f'buffer_store_dwordx4 v[36:39], v32, {WS}, 0 offen sc1', 's_mov_b64 exec, s[98:99]'])
    p.vm('pst')

def colsum(p):
    a = []
    for t in range(8):
        c = '0' if t == 0 else 'v[152:155]'
        a.append(f'v_mfma_f32_16x16x32_bf16 v[152:155], v[{V_SEL}:{V_SEL+3}], a[{4*t}:{4*t+3}], {c}')
    p.atom(a + ['s_nop 7', 's_nop 0'] + [f'v_add_f32_dpp v{152+r}, v{152+r}, v{152+r} row_shr:8 row_mask:0xf bank_mask:0xf bound_ctrl:1' for r in range(4)])
    p.atom(['s_mov_b64 s[98:99], exec', f's_mov_b64 exec, s[{S_CSM}:{S_CSM+1}]',
            f'buffer_store_dwordx4 v[152:155], v{V_CSO}, {WS}, s{S_CSST} offen sc1', 's_mov_b64 exec, s[98:99]'])
    p.vm('pst')

def kv_compute(p, pas):
    for cc in range(2):
        c2 = 2*pas + cc
        for i in range(7):
            p(f'v_lshlrev_b32 v{44+i}, 16, v{72+4*i+c2}'); p(f'v_and_b32 v{51+i}, 0xffff0000, v{72+4*i+c2}')
        for hh in range(2):
            b = 116 + 4*c2 + 2*hh
            p(f'v_lshlrev_b32 v{8+4*hh}, 16, v{b}'); p(f'v_and_b32 v{9+4*hh}, 0xffff0000, v{b}')
            p(f'v_lshlrev_b32 v{10+4*hh}, 16, v{b+1}'); p(f'v_and_b32 v{11+4*hh}, 0xffff0000, v{b+1}')
        for i in range(4):
            p(f'v_lshlrev_b32 v{16+i}, 16, v{100+4*i+c2}'); p(f'v_and_b32 v{20+i}, 0xffff0000, v{100+4*i+c2}')
        for j in (3, 2, 1, 0):
            for hh in range(2):
                kb = 44 + 7*hh; sb = 8 + 4*hh; rb = 24 + 4*hh
                for i in range(4):
                    p(f'v_mul_f32 v{rb+i}, v{kb+i}, v{sb+3}' if j == 3 else f'v_fmac_f32 v{rb+i}, v{kb+i+3-j}, v{sb+j}')
        for hh in range(2):
            for i in range(4): p(f'v_mul_f32 v{24+4*hh+i}, v{24+4*hh+i}, v{16+4*hh+i}')
        for hh in range(2):
            rb = 24 + 4*hh; o = 60 + cc*4 + hh*2
            p(f'v_cvt_pk_bf16_f32 v{o}, v{rb+3}, v{rb+2}'); p(f'v_cvt_pk_bf16_f32 v{o+1}, v{rb+1}, v{rb}')

def kv_write(p):
    p.atom([f'ds_write_b64 v{V_TW}, v[{60+2*i}:{61+2*i}] offset:{i*256}' for i in range(4)] + ['s_waitcnt lgkmcnt(0)'])

def kv_store(p, pas):
    a = [f'ds_read_b128 v[{32+4*q}:{35+4*q}], v{V_TR+q}' for q in range(2)]
    a += [f's_add_u32 {T0}, s{S_URA}, {4*pas*UR_PITCH}', 's_waitcnt lgkmcnt(0)']
    for q in range(2): a.append(f'buffer_store_dwordx4 v[{32+4*q}:{35+4*q}], v{V_UR+q}, {WS}, {T0} offen sc1')
    p.atom(a); p.vm('kst', 2)

def kv_pad(p):
    a = [f'v_mov_b32 v{68+i}, 0' for i in range(4)]
    a += [f's_lshl_b32 {T0}, s{S_W4}, 4', f'v_add_u32 v5, {T0}, v1', f'v_mul_u32_u24 v5, {UR_PITCH}, v5',
          f's_cmp_eq_u32 s{S_ST}, 0', f's_cselect_b32 {T0}, 0, 0x20000000', f'v_add_u32 v5, {T0}, v5',
          f's_lshl_b32 {T0}, s{S_DT}, 6', f's_mul_i32 {T0}, {T0}, {UR_PITCH}', f's_add_u32 {T0}, {T0}, {WS_UR + 4096}',
          'v_cmp_gt_u32 vcc, 16, v1', 's_and_saveexec_b64 s[98:99], vcc',
          f'buffer_store_dwordx4 v[68:71], v5, {WS}, {T0} offen sc1', 's_mov_b64 exec, s[98:99]']
    p.atom(a); p.vm('kst')

def cs_loads(e, vq):
    e(f's_lshl_b32 s10, s{S_W4}, 6'); e('v_add_u32 v72, s10, v1')
    e(f's_mul_i32 s11, s{S_NT1}, 224'); e('v_add_u32 v73, s11, v72')
    e('v_lshlrev_b32 v74, 2, v73'); e(f'v_add_u32 v74, {WS_CS}, v74')
    for p in range(16):
        e(f's_mov_b32 s10, {p*3584*4}')
        e(f'buffer_load_dword v{76+p}, v74, {WS}, s10 offen sc1')
    e('v_lshlrev_b32 v75, 1, v73')
    mk_srd(e, SRD_D, P_B1, 3584*2)
    e(f'buffer_load_ushort v92, v75, {ssrd(SRD_D)}, 0 offen')
    vq.issue('csl', 17)
def cs_finish(e):
    for p in range(1, 16, 2): e(f'v_add_f32 v{76+p-1}, v{76+p-1}, v{76+p}')
    for p in range(0, 16, 4): e(f'v_add_f32 v{76+p}, v{76+p}, v{76+p+2}')
    e('v_add_f32 v76, v76, v80'); e('v_add_f32 v84, v84, v88'); e('v_add_f32 v76, v76, v84')
    e('v_lshlrev_b32 v92, 16, v92')
    e('v_lshlrev_b32 v72, 2, v72'); e(f'v_add_u32 v72, {CSB}, v72')
    e('v_cmp_gt_u32 vcc, 0x%x, v72' % (CSB + 896))
    lab = e.newlabel('L_x')
    e('s_and_saveexec_b64 s[98:99], vcc'); e(f's_cbranch_execz {lab}')
    e('ds_write_b32 v72, v76'); e('ds_write_b32 v72, v92 offset:896')
    e.label(lab); e('s_mov_b64 exec, s[98:99]'); e('s_waitcnt lgkmcnt(0)')

def cost(line):
    if line.startswith('v_dot2'): return 2.0
    if line.startswith('v_mfma'): return 2.0
    if line.startswith('v_'): return 1.0
    if line.startswith('buffer_') or line.startswith('ds_'): return 2.0
    return 0.4

class Slicer:
    def __init__(self, prog):
        if isinstance(prog, tuple): self.ld, self.act, prog = prog
        else: self.ld, self.act = {}, None
        self.a = prog.a; self.i = 0; self.marks = {}
    def done(self): return self.i >= len(self.a)
    def emit_all(self, e, vq, p):
        for x in p.a:
            if isinstance(x, tuple):
                if x[0] == 'vm': vq.issue(x[1], x[2])
                else: raise ValueError(x)
            else:
                for l in x: e(l)
    def emit(self, e, vq, budget, period):
        c = 0.0
        for a in self.ld.get(period, []):
            p = Prog(); self.act(p, a); self.emit_all(e, vq, p)
            c += sum(sum(cost(l) for l in x) for x in p.a if not isinstance(x, tuple))
        first = True
        while self.i < len(self.a):
            x = self.a[self.i]
            if isinstance(x, tuple):
                if x[0] == 'at':
                    if period < x[1]: return
                    self.i += 1; continue
                self.i += 1
                if x[0] == 'vm': vq.issue(x[1], x[2])
                elif x[0] == 'wait': vq.wait(e, x[1])
                elif x[0] == 'mark': self.marks[x[1]] = period
                elif x[0] == 'bar': return
                continue
            cc = sum(cost(l) for l in x)
            if not (first and c < budget) and c + cc > budget: return
            for l in x: e(l)
            c += cc; self.i += 1; first = False

def program(o):
    g = o.get
    ld = g('ld', {-1: ['st'], 0: ['w5-7'], 1: ['w7-9', 'k0-4'], 2: ['w9-11', 'k4-7', 'sk'], 3: ['w11-13', 'v0-4'], 4: ['w13-16'], 6: ['c0-8']})
    ld = {int(k): v for k, v in ld.items()}
    def act(p, a):
        if a == 'sk': return sk_loads(p)
        if a == 'st': return stats_loads(p)
        k, r = a[0], a[1:].split('-'); lo, hi = int(r[0]), int(r[1])
        if k == 'w': pf_w1(p, lo, hi)
        elif k == 'x': pf_x(p, lo, hi)
        elif k == 'k': k_loads(p, range(lo, hi))
        elif k == 'v': v_loads(p, range(lo, hi))
        elif k == 'c': cs_slab_loads(p, range(lo, hi))
    c = Prog()
    c.at(g('at_stc', 0)); c.wait(['st']); stats(c); c.mark('st')
    order = g('order', 'cs_first')
    if order == 'cs_first':
        c.at(g('at_kvc', 5)); c.wait(['kv']); kv_compute(c, 0); kv_write(c)
        c.bar()
        kv_store(c, 0); c.mark('stA')
        c.at(g('at_csc', 8)); c.wait(['cs']); colsum(c); c.mark('pf1')
        kv_compute(c, 1); c.mark('wrB'); kv_write(c); c.bar()
        kv_store(c, 1); kv_pad(c); c.mark('pf2')
    return ld, act, c
```

```python
import sys
from fz_common import *
import fz_g1 as g1, fz_g2h as g2, fz_prep as prep, fz_conv as conv, fz_ln as ln

KNAME = 'parallel_sum__ssm_conv_h3__mixer_channel_mlp__prompt_kernel'
WS = ssrd(SRD_WS)
LDS_NONCE = 163328
NON = f's{S_NONCE}'

def flag_store(e, soff, va=142):
    e(f'v_mov_b32 v{va}, 0'); e(f'v_mov_b32 v{va+1}, {NON}')
    e(f'buffer_store_dword v{va+1}, v{va}, {WS}, {soff} offen sc1')

def emit_prog(e, vq, fn):
    p = prep.Prog(); fn(p); sl = prep.Slicer(p); sl.emit(e, vq, 1e9, 99); assert sl.done()

def gen(name=KNAME, stamps=False, opt=None):
    opt = opt or {}
    POLL_SLEEP[0] = opt.get('sleep', 4)
    BUD = opt.get('budget', 70); PUBD = opt.get('pubd', 2); W2P = opt.get('at_w2', 99)
    sl = prep.Slicer(prep.program(opt)); dq = VQ(); de = Em()
    for i in range(0, 16): sl.emit(de, dq, BUD, i)
    assert sl.done(), ('prep program does not fit', sl.i, len(sl.a))
    assert sl.marks['wrB'] > sl.marks['stA']
    pub0 = max(sl.marks['st'] + PUBD, 2); pub1 = sl.marks['pf1'] + PUBD; pub2 = sl.marks['pf2'] + 1
    assert pub1 <= 13 and sl.marks['pf2'] <= 15 and sl.marks['wrB'] <= 13, sl.marks
    if opt.get('verbose'): print('marks', sl.marks)

    e = Em()
    END = 'L_end_' + name
    e('s_cmp_ge_u32 s2, 256'); e(f's_cbranch_scc1 {END}')
    e('s_load_dwordx16 s[64:79], s[0:1], 0')
    e('s_load_dwordx8 s[80:87], s[0:1], 64')
    e('s_load_dwordx4 s[88:91], s[0:1], 96')
    e('v_lshrrev_b32 v1, 6, v0'); e('s_nop 1'); e(f'v_readfirstlane_b32 s{S_WAVE}, v1'); e('v_and_b32 v1, 63, v0')
    e(f's_and_b32 s{S_W4}, s{S_WAVE}, 3')
    e('s_and_b32 s10, s2, 7'); e('s_lshr_b32 s11, s2, 3')
    e(f's_and_b32 s{S_MT1}, s10, 1'); e(f's_lshl_b32 s{S_MT1}, s{S_MT1}, 3'); e('s_and_b32 s12, s11, 7'); e(f's_add_u32 s{S_MT1}, s{S_MT1}, s12')
    e(f's_lshr_b32 s{S_NT1}, s10, 1'); e(f's_lshl_b32 s{S_NT1}, s{S_NT1}, 2'); e('s_lshr_b32 s12, s11, 3'); e(f's_add_u32 s{S_NT1}, s{S_NT1}, s12')
    g2.map_tiles(e)
    e('s_waitcnt lgkmcnt(0)')
    mk_srd(e, SRD_X, P_X, 2048*1024*2); mk_srd(e, SRD_W1, P_W1, 1024*3584*2); mk_srd(e, SRD_WS, P_WS, 0x10000000)
    if stamps:
        e('v_mov_b32 v158, 0'); e('v_mov_b32 v159, 0')
        tick(e, 0)
    st = (lambda n: tick(e, n)) if stamps else (lambda n: None)
    LAB_L = 'L_loader_' + name
    e(f's_cmp_ge_u32 s{S_WAVE}, 4'); e(f's_cbranch_scc1 {LAB_L}')

    def get_nonce(v=2):
        e(f'v_mov_b32 v{v}, {LDS_NONCE}'); e(f'ds_read_b32 v{v+1}, v{v}'); e('s_waitcnt lgkmcnt(0)'); e(f'v_readfirstlane_b32 {NON}, v{v+1}')

    g1.l_setup(e)
    if opt.get('coop', 0):
        g1.l_setup_w(e)
        e('s_barrier')
        e.extend(g1.l_dma_x(0))
    else:
        e.extend(g1.l_dma_x(0))
        g1.l_setup_w(e)
    lab = e.newlabel('L_skip')
    e(f's_cmp_eq_u32 s{g1.SHI}, 1'); e(f's_cbranch_scc1 {lab}')
    e.extend(g1.l_dma_w()); e.label(lab); e.extend(g1.l_adv_w())
    e.extend(g1.l_dma_x(1)); e.extend(g1.l_dma_w()); e.extend(g1.l_adv_w())
    e.extend(g1.l_dma_x(2)); e.extend(g1.l_dma_w()); e.extend(g1.l_adv_w())
    g1.c_setup(e)
    e('s_waitcnt vmcnt(11)')
    e('s_barrier')
    e.extend(g1.c_reads(0)); e('s_waitcnt lgkmcnt(0)')
    st(1)
    for i in range(16):
        e('s_barrier')
        st(16 + i)
        if i == 13:
            lab = e.newlabel('L_s13')
            e(f's_cmp_eq_u32 s{g1.SHI}, 0'); e(f's_cbranch_scc1 {lab}'); e.extend(g1.l_dma_w()); e.label(lab)
        if i == 14: g1.c_epi_pre(e); get_nonce(2 if False else 143)
        if i == 15: g1.c_stats_loads(e)
        e.extend(g1.period_code(i, opt.get('spacing', 5), opt.get('gstart', 0)))
        if i <= 12: e('s_waitcnt vmcnt(11)')
        elif i == 13:
            lab = e.newlabel('L_w13'); lab2 = e.newlabel('L_w13j')
            e(f's_cmp_eq_u32 s{g1.SHI}, 0'); e(f's_cbranch_scc1 {lab}')
            e('s_waitcnt vmcnt(7)'); e(f's_branch {lab2}')
            e.label(lab); e('s_waitcnt vmcnt(0)'); e.label(lab2)
        elif i == 14: e('s_waitcnt vmcnt(0)')
    e('s_barrier')
    st(2)
    g1.c_epilogue(e, st, opt)
    st(7)
    e('s_barrier')
    g2.l_setup(e)
    g2.pf_setup(e)
    e('s_waitcnt vmcnt(0)')
    e(f's_lshl_b32 s10, s{S_MT1}, 6'); e(f's_lshl_b32 s11, s{S_NT1}, 2'); e('s_add_u32 s10, s10, s11'); e(f's_add_u32 s10, s10, s{S_W4}')
    e('s_lshl_b32 s10, s10, 2'); e(f's_add_u32 s10, s10, {WS_FL + FL_HF}')
    flag_store(e, 's10')
    st(3)
    for i in range(2): e.extend(g2.l_dma_w(i))
    e('v_lshlrev_b32 v10, 2, v1'); e(f's_lshl_b32 s12, s{S_MT2}, 8'); e(f's_add_u32 s12, s12, {WS_FL + FL_HF}')
    poll_flags(e, SRD_WS, 10, 's12', NON, 11)
    st(8)
    for i in range(2): e.extend(g2.l_dma_h(i))
    g2.c_setup(e)
    e('s_waitcnt vmcnt(0)')
    st(9)
    e('s_barrier')
    e.extend(g2.c_reads(0)); e('s_waitcnt lgkmcnt(0)')
    st(4)
    if stamps: e('v_mov_b32 v156, 0'); e('v_mov_b32 v157, 0')
    XD = opt.get('xf_delay', 5)
    PFB = {int(k): v for k, v in opt.get('pfb', {0: 1, 5: 2, 13: 3, 19: 4}).items()}
    for i in range(g2.NST):
        e('s_barrier')
        if stamps and opt.get('g2ticks', 1): tick(e, i, 157)
        extra = []
        if i in PFB: g2.pf_batch(e, PFB[i], PFB[i] & 3)
        if i == g2.NB: st(40); g2.c_send_setup(e)
        if g2.NB <= i < g2.NB + 2: extra = g2.c_send_stores(i - g2.NB)
        if i == g2.NB + XD: g2.c_send_flag(e, NON)
        if i == g2.NST - 2: g2.c_epi_pre(e)
        rd = g2.c_reads(i+1) if i+1 < g2.NST else []
        mf = g2.c_mfmas(i)
        if extra:
            body = []; k = 0; nm = 0
            for ins in interleave(mf, rd):
                body.append(ins)
                if ins.startswith('v_mfma'):
                    nm += 1
                    if nm % 4 == 2 and k < len(extra): body.extend(extra[k]); k += 1
            for g_ in extra[k:]: body.extend(g_)
            e.extend(body)
        else: e.extend(interleave(mf, rd, per=opt.get('g2per', 1)))
        e('s_waitcnt lgkmcnt(0)')
    e('s_barrier')
    st(5)
    g2.c_epi(e)
    e('s_barrier')
    g2.final_store(e)
    if stamps:
        e('s_waitcnt vmcnt(0)'); st(6); tick_dump(e); tick_dump(e, 157, 1)
    e(f's_branch {END}')

    e.label(LAB_L)
    vq = VQ()
    e('v_mov_b32 v2, 0'); e(f's_mov_b32 s12, {WS_FL + FL_EP}')
    e(f'buffer_load_dword v132, v2, {WS}, s12 offen sc1'); vq.issue('tag')
    if opt.get('tlb', 1):
        STEP = opt.get('tlb_step', 1 << 20)
        regs = [(P_WS, 0x10000000, WS_BASE, 0x3000000), (P_W2, 3584*1024*2, 0, 3584*1024*2), (P_W1, 1024*3584*2, 0, 1024*3584*2), (P_K, 1 << 22, 0, 1 << 22),
                (P_V, 1 << 22, 0, 1 << 22), (P_SSM, 1 << 22, 0, 1 << 22), (P_OUT, 1 << 22, 0, 1 << 22), (P_X, 1 << 22, 0, 1 << 22),
                (P_B1, 7168, 0, 4), (P_B2, 2048, 0, 4), (P_D, 2048, 0, 4), (P_SK, 8192, 0, 4)]
        labx = e.newlabel('L_tlbx')
        e(f's_cmp_eq_u32 s{S_W4}, 1'); e(f's_cbranch_scc0 {labx}')
        e('s_lshr_b32 s13, s2, 3')
        for r, (ptr, tot, off, span) in enumerate(regs):
            lab = e.newlabel('L_tlb')
            e(f's_cmp_eq_u32 s13, {r}'); e(f's_cbranch_scc0 {lab}')
            mk_srd(e, SRD_D, ptr, tot)
            n = max(1, min(64, (span + STEP - 1)//STEP))
            e(f's_mov_b32 s10, {STEP}'); e('v_mul_lo_u32 v4, s10, v1'); e(f's_mov_b32 s11, {off}')
            e('s_mov_b64 s[98:99], exec'); e(f's_bfm_b64 exec, {n}, 0') if n < 64 else e('s_mov_b64 exec, -1')
            e(f'buffer_load_dword v131, v4, {ssrd(SRD_D)}, s11 offen')
            e('s_mov_b64 exec, s[98:99]')
            e.label(lab)
        e.label(labx)
    prep.pre_pf(e)
    COOP = opt.get('coop', 0)
    sl = prep.Slicer(prep.program(opt))
    if COOP:
        emit_prog(e, vq, lambda p: (prep.pf_x(p, 0, COOP), prep.pf_w1(p, 0, COOP)))
        prep.pre_rest(e)
        vq.wait(e, 'pf')
        e('s_barrier')
    else:
        emit_prog(e, vq, lambda p: prep.pf_w1(p, 3, 5))
        prep.pre_rest(e)
    for a_ in sl.ld.get(-1, []):
        p_ = prep.Prog(); sl.act(p_, a_); sl.emit_all(e, vq, p_)
    prep.pre_cs(e)
    e('s_barrier')
    e('s_barrier')
    st(1)
    def wave0(body):
        lab = e.newlabel('L_w0')
        e(f's_cmp_eq_u32 s{S_W4}, 0'); e(f's_cbranch_scc0 {lab}'); body(); e.label(lab)
    def uf_publish():
        vq.wait(e, 'kst')
        e(f's_lshl_b32 s10, s{prep.S_DT}, 4'); e(f's_add_u32 s10, s10, s{prep.S_ST}'); e('s_lshl_b32 s10, s10, 2'); e(f's_add_u32 s10, s10, s{S_W4}')
        e('s_lshl_b32 s10, s10, 2'); e(f's_add_u32 s10, s10, {WS_FL + FL_UF}')
        flag_store(e, 's10', va=2); vq.issue('uf')
    for i in range(16):
        if i == 0:
            vq.wait(e, 'tag')
            def body():
                e('v_add_u32 v3, 1, v132')
                e(f'v_mov_b32 v2, {LDS_NONCE}'); e('ds_write_b32 v2, v3'); e('s_waitcnt lgkmcnt(0)')
            wave0(body)
        if i == 1:
            get_nonce()
            e('s_lshl_b32 s10, s2, 2'); e(f's_add_u32 s10, s10, s{S_W4}'); e('s_lshl_b32 s10, s10, 2'); e(f's_add_u32 s59, s10, {WS_FL + FL_ZF}')
        if i == pub0:
            def body():
                e(f's_lshl_b32 s10, s{S_MT1}, 4'); e(f's_add_u32 s10, s10, s{S_NT1}'); e('s_lshl_b32 s10, s10, 2'); e(f's_add_u32 s10, s10, {WS_FL + FL_YF}')
                flag_store(e, 's10', va=2)
            wave0(body)
        if i == pub1:
            def body():
                e(f's_and_b32 s11, s{prep.S_XCD}, 1')
                e('s_mul_i32 s13, s11, 28'); e(f's_add_u32 s13, s13, s{prep.S_J}')
                e('s_lshl_b32 s11, s11, 2'); e(f's_add_u32 s11, s11, s{prep.S_J}'); e('s_add_u32 s11, s11, 28')
                e(f's_cmp_lt_u32 s{prep.S_J}, 28'); e('s_cselect_b32 s11, s13, s11')
                e(f's_lshr_b32 s10, s{prep.S_XCD}, 1'); e('s_lshl_b32 s10, s10, 6'); e('s_add_u32 s10, s10, s11')
                e('s_lshl_b32 s10, s10, 2'); e(f's_add_u32 s10, s10, {WS_FL + FL_CF}')
                flag_store(e, 's10', va=2)
            wave0(body)
        sl.emit(e, vq, BUD, i)
        if W2P <= i < W2P + 4:
            emit_prog(e, vq, lambda p: prep.pf_lin(p, P_W2, 3584*1024*2, 56*(i - W2P), 56, 224))
        if i == opt.get('at_ssm', 13):
            emit_prog(e, vq, lambda p: prep.pf_lin(p, P_SSM, 1024*2048*2, 0, 128, 128, opt.get('ssm_nt', '')))
        if i == opt.get('w2b0', -5):
            mk_srd(e, SRD_D, P_W2, 3584*1024*2); g2.pf_setup(e, 's15', 58); g2.pf_batch(e, 0, 0, SRD_D, 's15', 58)
        if i == 13:
            e('v_and_b32 v41, 15, v1'); e('v_lshlrev_b32 v41, 2, v41'); e(f's_lshl_b32 s12, s{S_MT1}, 6'); e(f's_add_u32 s12, s12, {WS_FL + FL_YF}')
            e(f'buffer_load_dword v40, v41, {WS}, s12 offen sc1')
            e('v_lshlrev_b32 v43, 2, v1'); e(f's_lshr_b32 s13, s{S_NT1}, 2'); e('s_lshl_b32 s13, s13, 8'); e(f's_add_u32 s13, s13, {WS_FL + FL_CF}')
            e(f'buffer_load_dword v42, v43, {WS}, s13 offen sc1')
            vq.issue('smp', 2)
        if i == 14:
            vq.wait(e, 'smp')
            check_or_poll(e, SRD_WS, 41, 's12', NON, 40)
            check_or_poll(e, SRD_WS, 43, 's13', NON, 42)
            prep.cs_loads(e, vq)
        if i == 15:
            e('v_lshlrev_b32 v10, 2, v1'); e('s_lshr_b32 s12, s2, 4'); e('s_lshl_b32 s12, s12, 8'); e(f's_add_u32 s12, s12, {WS_FL + FL_UF}')
            e(f'buffer_load_dword v12, v10, {WS}, s12 offen sc1'); vq.issue('smp2')
            vq.wait(e, 'csl'); prep.cs_finish(e)
            conv.base(e)
        if i == pub0 - 1: vq.wait(e, 'pst') if sl.marks.get('pf1') is None else None
        if i == pub1 - 1: vq.wait(e, 'pst')
        if i == pub2: uf_publish()
        st(16 + i)
        e('s_barrier')
    assert sl.done()
    st(2)
    if pub2 >= 16: uf_publish()
    vq.wait_all(e)
    check_or_poll(e, SRD_WS, 10, 's12', NON, 12)
    if opt.get('x_noconvdma'):
        t_ = Em(); conv.setup(t_, vq); e.extend([l for l in t_.L if not l.endswith(' lds')])
    else: conv.setup(e, vq)
    st(10)
    conv.odd_copies(e, vq)
    e('s_barrier')
    mk_srd(e, SRD_D, P_W2, 3584*1024*2); g2.pf_setup(e); g2.pf_batch(e, 0, opt.get('pf0w', 0), SRD_D)
    conv.compute(e, vq, st)
    vq.wait_all(e)
    flag_store(e, 's59', va=2); vq.issue('zf')
    st(3)
    g2.l_setup(e)
    e('s_barrier')
    for i in range(2, g2.NS): e.extend(g2.l_dma_w(i)); e.extend(g2.l_dma_h(i)); vq.issue(f'g{i}', 4 + g2.nw(i))
    st(4)
    if stamps: e('v_mov_b32 v156, 0'); e('v_mov_b32 v157, 0')
    e('s_barrier')
    RS = g2.NST - opt.get('rs', 5)
    for i in range(g2.NST):
        if i == RS: g2.l_recv_sample(e); vq.issue('smp4')
        if i == RS + 1:
            e('v_lshlrev_b32 v10, 2, v1'); e(f's_lshl_b32 s12, s{S_NT2}, 8'); e(f's_add_u32 s12, s12, {WS_FL + FL_ZF}')
            e(f'buffer_load_dword v11, v10, {WS}, s12 offen sc1'); vq.issue('smp3')
        if i + g2.NS < g2.NST:
            e.extend(g2.l_dma_w(i+g2.NS)); e.extend(g2.l_dma_h(i+g2.NS)); vq.issue(f'g{i+g2.NS}', 4 + g2.nw(i+g2.NS))
        if i == RS + 1:
            vq.wait(e, 'smp4'); g2.l_recv(e, NON); vq.issue('xp', 8)
        if i == max(RS + 2, g2.NST - 3):
            vq.wait(e, 'smp3')
            check_or_poll(e, SRD_WS, 10, 's12', NON, 11)
            g2.l_epi_loads(e); vq.issue('epi', 8)
        if i + 2 < g2.NST: vq.wait(e, f'g{i+2}')
        if i == g2.NST - 1: vq.wait_all(e)
        if stamps: tick(e, i, 157)
        e('s_barrier')
    st(5)
    lab = e.newlabel('L_ep')
    e(f's_cmp_eq_u32 s{S_WAVE}, 4'); e(f's_cbranch_scc0 {lab}'); e('s_cmp_eq_u32 s2, 0'); e(f's_cbranch_scc0 {lab}')
    e(f's_mov_b32 s10, {WS_FL + FL_EP}'); flag_store(e, 's10', va=2)
    e.label(lab)
    e('s_barrier')
    g2.final_store(e)
    if stamps:
        e('s_waitcnt vmcnt(0)'); st(6); tick_dump(e); tick_dump(e, 157, 1)
    e.label(END)
    return kernel(name, e.text(), 256, 160)

def header():
    return open('ref_header.txt').read()

def full(stamps=False, opt=None):
    return header() + '; @launch grid=(256,1,1) block=(512,1,1) lds=163840\n' + HDR + gen(stamps=stamps, opt=opt)

NAMES_C = {0:'start',1:'main0',2:'main_end',7:'gelu',3:'h_ack',8:'hpoll',9:'pre3',4:'g2_start',40:'send',5:'g2_end',6:'end'}
NAMES_L = {0:'start',1:'B0',2:'main_end',10:'cv_iss',7:'cv_data',8:'cv_mfma',9:'z_iss',3:'z_ack',4:'g2',5:'g2_end',6:'end'}

if __name__ == '__main__':
    import json
    out = sys.argv[1] if len(sys.argv) > 1 else 'fused.s'
    opt = json.loads(sys.argv[2]) if len(sys.argv) > 2 else {}
    opt['verbose'] = True
    t = full(opt=opt)
    open(out, 'w').write(t)
    print(len(t), 'bytes', t.count('\n'), 'lines')
```
